```python
import torch

def _softmax(x, axis=-1):
    return torch.softmax(x, dim=axis)

def _gelu(x):
    return torch.nn.functional.gelu(x, approximate='tanh')

def _silu(x):
    return torch.nn.functional.silu(x)

def _sigmoid(x):
    return torch.sigmoid(x)

def _layernorm(x, axis=-1, eps=1e-05):
    m = x.mean(dim=axis, keepdim=True)
    v = x.var(dim=axis, keepdim=True, unbiased=False)
    return (x - m) / torch.sqrt(v + eps)

def _scatter_add(tgt, idx, src, axis=0):
    return tgt.clone().index_add_(axis, idx, src)

def _segment_sum(src, seg, n):
    out = torch.zeros((n,) + src.shape[1:], dtype=src.dtype)
    return out.index_add_(0, seg, src)

def _pad(x, pw):
    flat = tuple((v for pair in reversed(pw) for v in pair))
    return torch.nn.functional.pad(x, flat)
kernel_name = 'adaLN_cond__mha_block_cached__mixer_s_mlp__prompt'

def setup_inputs():

    _w = lambda a: (lambda t: t.to(torch.bfloat16) if t.is_floating_point() else t)(torch.as_tensor(a))

    def _A_setup():
        B, Sq, D = (1, 2048, 512)
        H, Sk, Dh = (32, 2048, 128)
        return {'x': _w((lambda *s: torch.randn(*s, dtype=torch.bfloat16) * 0.1)(B, Sq, D)), 'k_cache': _w((lambda *s: torch.randn(*s, dtype=torch.bfloat16) * 0.8)(B, H, Sk, Dh)), 'v_cache': _w((lambda *s: torch.randn(*s, dtype=torch.bfloat16) * 0.8)(B, H, Sk, Dh)), 'wq': _w((lambda *s: torch.randn(*s, dtype=torch.bfloat16) * 0.8)(D, H * Dh) * D ** (-0.5)), 'wo': _w((lambda *s: torch.randn(*s, dtype=torch.bfloat16) * 0.8)(H * Dh, D) * (H * Dh) ** (-0.5))}
    _A_in = _A_setup()

    def _B_setup():
        B, S, D, F = (1, 2048, 512, 1792)
        return {'x': _w((lambda *s: torch.randn(*s, dtype=torch.bfloat16) * 0.1)(B, S, D)), 'w1': _w((lambda *s: torch.randn(*s, dtype=torch.bfloat16) * 3.2)(D, D) * D ** (-0.5)), 'w2': _w((lambda *s: torch.randn(*s, dtype=torch.bfloat16) * 3.2)(D, D) * D ** (-0.5)), 'w3': _w((lambda *s: torch.randn(*s, dtype=torch.bfloat16) * 3.2)(D, F) * D ** (-0.5)), 'w4': _w((lambda *s: torch.randn(*s, dtype=torch.bfloat16) * 3.2)(F, D) * F ** (-0.5))}
    _B_in = _B_setup()
    return {'A_x': _A_in['x'], 'A_k_cache': _A_in['k_cache'], 'A_v_cache': _A_in['v_cache'], 'A_wq': _A_in['wq'], 'A_wo': _A_in['wo'], 'B_x': _B_in['x'], 'B_w1': _B_in['w1'], 'B_w2': _B_in['w2'], 'B_w3': _B_in['w3'], 'B_w4': _B_in['w4'], 'c': _w((lambda *s: torch.randn(*s, dtype=torch.bfloat16) * 0.2)(1, 512) * 8.0), 'w_mod': _w((lambda *s: torch.randn(*s, dtype=torch.bfloat16) * 0.2)(512, 6 * 512) * 512 ** (-0.5) * 8.0)}

def reference(A_x, A_k_cache, A_v_cache, A_wq, A_wo, B_x, B_w1, B_w2, B_w3, B_w4, c, w_mod):

    def _A_ref(x, k_cache, v_cache, wq, wo):
        B, Sq, D = x.shape
        H, Dh = (32, 128)
        q = (lambda x, *d: x.permute(*d))((x @ wq).reshape(B, Sq, H, Dh), 0, 2, 1, 3)
        scores = torch.einsum('bhqd,bhkd->bhqk', q, k_cache) * Dh ** (-0.5)
        p = _softmax(scores, axis=-1)
        o = torch.einsum('bhqk,bhkd->bhqd', p, v_cache)
        return (lambda x, *d: x.permute(*d))(o, 0, 2, 1, 3).reshape(B, Sq, H * Dh) @ wo

    def _B_ref(x, w1, w2, w3, w4):
        B, S, D = x.shape
        h = _gelu(_layernorm(x, axis=-1) @ w1)
        c = D // 4
        g0 = _pad(h[:, :, 0 * c:1 * c], ((0, 0), (1, 0), (0, 0)))[:, :S, :]
        g1 = _pad(h[:, :, 1 * c:2 * c], ((0, 0), (0, 1), (0, 0)))[:, 1:, :]
        g2 = _pad(h[:, :, 2 * c:3 * c], ((0, 0), (2, 0), (0, 0)))[:, :S, :]
        g3 = _pad(h[:, :, 3 * c:], ((0, 0), (0, 2), (0, 0)))[:, 2:, :]
        hs = torch.concatenate([g0, g1, g2, g3], axis=-1) @ w2
        x1 = x + hs
        h2 = _gelu(_layernorm(x1, axis=-1) @ w3) @ w4
        return x1 + h2
    x = A_x
    mod = (_silu(c) @ w_mod).reshape(c.shape[0], 6, 1, -1)
    sa, ca, ga, sb, cb, gb = (mod[:, 0].clone(), mod[:, 1].clone(), mod[:, 2].clone(), mod[:, 3].clone(), mod[:, 4].clone(), mod[:, 5].clone())
    h = _layernorm(x, axis=-1) * (1 + ca) + sa
    x = x + ga * _A_ref(h, A_k_cache, A_v_cache, A_wq, A_wo)
    h = _layernorm(x, axis=-1) * (1 + cb) + sb
    x = x + gb * _B_ref(h, B_w1, B_w2, B_w3, B_w4)
    return x
```

```python
import re


def v(n, c=1):
    return f"v{n}" if c == 1 else f"v[{n}:{n + c - 1}]"


def a(n, c=1):
    return f"a{n}" if c == 1 else f"a[{n}:{n + c - 1}]"


def s(n, c=1):
    return f"s{n}" if c == 1 else f"s[{n}:{n + c - 1}]"


class Kern:
    def __init__(self, name, vgpr, agpr, sgpr=96):
        self.name = name
        self.lines = []
        self.vgpr = vgpr
        self.agpr = agpr
        self.sgpr = sgpr
        self.vm = []

    def e(self, text):
        if text is None:
            return
        for ln in text.split("\n"):
            ln = ln.strip()
            if ln:
                if ln.endswith(" lds") and self.lines and re.match(r"s_\w+ m0,", self.lines[-1]):
                    self.lines.append("s_nop 0")
                self.lines.append(ln)

    def label(self, name):
        self.lines.append(name + ":")

    def c(self, text):
        self.lines.append("; " + text)

    STAMPS = False
    OFF_DBG = 200 << 20

    def stamp(self):
        if not Kern.STAMPS:
            return
        i = getattr(self, "nst", 0)
        self.nst = i + 1
        assert i < 8
        self.e(f"s_memtime s[{64 + 4 * i}:{65 + 4 * i}]")
        self.e(f"s_memrealtime s[{66 + 4 * i}:{67 + 4 * i}]")
        self.e("s_waitcnt lgkmcnt(0)")

    def stamp_flush(self, slot, wsptr_kernarg=112):
        if not Kern.STAMPS:
            return
        n = getattr(self, "nst", 0)
        self.sgpr = max(self.sgpr, 100)
        lab = f"L_stamp_{self.name}_{len(self.lines)}"
        self.e("s_mov_b64 exec, -1")
        self.e("s_load_dwordx2 s[96:97], s[0:1], 112")
        self.e("s_waitcnt lgkmcnt(0) vmcnt(0)")
        self.e(f"s_add_u32 s96, s96, {Kern.OFF_DBG + slot * (1 << 17)}")
        self.e("s_addc_u32 s97, s97, 0")
        self.e("s_mov_b32 s98, 131072")
        self.e("s_mov_b32 s99, 0x00020000")
        self.e("v_cmp_eq_u32 vcc, 0, v0")
        self.e("s_and_saveexec_b64 s[62:63], vcc")
        self.e(f"s_cbranch_execz {lab}")
        self.e("s_lshl_b32 s61, s2, 7")
        self.e("v_mov_b32 v2, s61")
        for i in range(n):
            self.e(f"v_mov_b32 v4, s{64 + 4 * i}")
            self.e(f"v_mov_b32 v5, s{66 + 4 * i}")
            self.e(f"buffer_store_dwordx2 v[4:5], v2, s[96:99], 0 offen offset:{8 * i}")
            self.e("s_waitcnt vmcnt(0)")
        self.label(lab)
        self.e("s_mov_b64 exec, s[62:63]")

    def vmem(self, text, tag):
        self.e(text)
        self.vm.append(tag)

    def vm_count_for(self, tags):
        if isinstance(tags, str):
            tags = [tags]
        last = -1
        for i, t in enumerate(self.vm):
            if t in tags:
                last = i
        if last < 0:
            return None
        return len(self.vm) - 1 - last

    def vm_wait(self, tags):
        n = self.vm_count_for(tags)
        if n is None:
            return None
        assert n <= 63, n
        self.vm = self.vm[len(self.vm) - n:] if n else []
        return f"s_waitcnt vmcnt({n})"

    def text(self):
        acc_off = (self.vgpr + 3) // 4 * 4
        out = [".text", f".globl {self.name}", ".p2align 8", f".type {self.name},@function", f"{self.name}:"]
        for ln in self.lines:
            out.append(ln if ln.endswith(":") else "    " + ln)
        desc = [
            '.section .rodata,"a"', ".p2align 6", f".amdhsa_kernel {self.name}",
            f"  .amdhsa_next_free_vgpr {acc_off + self.agpr if self.agpr else self.vgpr}",
            f"  .amdhsa_next_free_sgpr {self.sgpr}",
            f"  .amdhsa_accum_offset {acc_off}",
            "  .amdhsa_group_segment_fixed_size 0",
            "  .amdhsa_kernarg_size 120",
            "  .amdhsa_user_sgpr_count 2",
            "  .amdhsa_user_sgpr_kernarg_segment_ptr 1",
            "  .amdhsa_system_sgpr_workgroup_id_x 1",
            "  .amdhsa_float_denorm_mode_32 3",
            ".end_amdhsa_kernel",
        ]
        return "\n".join(out), "\n".join(desc)


def weight(ins):
    op = ins.split()[0]
    if op in ("v_exp_f32", "v_rcp_f32", "v_rsq_f32", "v_log_f32", "v_sqrt_f32"):
        return 2.0
    return 1.0


def interleave(mfmas, pre=None, post=None, flow=None, flow_lo=0, flow_hi=None):
    n = len(mfmas)
    pre = pre or {}
    post = {g: list(x) for g, x in (post or {}).items()}
    flow = flow or []
    flow_hi = n if flow_hi is None else flow_hi
    base = [sum(weight(x) for x in post.get(g, [])) + sum(weight(x) for x in pre.get(g + 1, []))
            for g in range(n)]
    span = range(flow_lo, flow_hi)
    tot = sum(weight(x) for x in flow) + sum(base[g] for g in span)
    tgt = tot / max(1, len(span))
    gi = flow_lo
    cum = 0.0
    basecum = base[gi] if n else 0
    placed = {g: [] for g in range(n)}
    for x in flow:
        while gi < flow_hi - 1 and cum + basecum >= tgt * (gi - flow_lo + 1):
            gi += 1
            basecum += base[gi]
        placed[gi].append(x)
        cum += weight(x)
    out = []
    for g in range(n):
        out += pre.get(g, [])
        out.append(mfmas[g])
        p = post.get(g, [])
        f = placed[g]
        out += p + f
    out += pre.get(n, [])
    return out


_REG = re.compile(r"\b([vas])(\d+)\b|\b([vas])\[(\d+):(\d+)\]")
TRANS = ("v_exp_f32", "v_log_f32", "v_rcp_f32", "v_rsq_f32", "v_sqrt_f32", "v_sin_f32", "v_cos_f32")


def regs_of(tok):
    out = []
    for m in _REG.finditer(tok):
        if m.group(1):
            out.append((m.group(1), int(m.group(2))))
        else:
            out += [(m.group(3), i) for i in range(int(m.group(4)), int(m.group(5)) + 1)]
    if re.search(r"\bvcc\b", tok):
        out.append(("s", "vcc"))
    if re.search(r"\bm0\b", tok):
        out.append(("s", "m0"))
    if re.search(r"\bexec\b", tok):
        out.append(("s", "exec"))
    return out


class Ins:
    def __init__(self, text):
        self.text = text
        parts = text.split(None, 1)
        self.op = parts[0]
        rest = parts[1] if len(parts) > 1 else ""
        rest = rest.split(";")[0]
        ops = [x.strip() for x in rest.split(",")] if rest else []
        self.ops = ops
        op = self.op
        self.is_mfma = op.startswith("v_mfma")
        self.is_valu = op.startswith("v_") and not self.is_mfma
        self.is_ds = op.startswith("ds_")
        self.is_vmem = op.startswith(("buffer_", "global_"))
        self.is_smem = op.startswith(("s_load", "s_memtime", "s_memrealtime"))
        self.is_lds_dma = self.is_vmem and re.search(r"\blds\b", rest) is not None
        self.rd, self.wr = [], []
        self.addr_rd = []
        R = [regs_of(x) for x in ops]
        if self.is_mfma:
            self.wr = R[0]
            self.srca, self.srcb, self.srcc = R[1], R[2], R[3]
            self.rd = R[1] + R[2] + R[3]
            self.passes = 8 if "32x32" in op else 4
        elif self.is_ds:
            if op.startswith("ds_read") or op.startswith("ds_bpermute") or op.startswith("ds_swizzle"):
                self.wr = R[0]
                self.rd = sum(R[1:], [])
            else:
                self.rd = sum(R, [])
        elif self.is_vmem:
            if self.is_lds_dma:
                self.rd = sum(R, []) + [("s", "m0")]
            elif "store" in op:
                self.rd = sum(R, [])
                self.store_data = R[0] if op.startswith("buffer_") else R[1]
            elif "atomic" in op:
                self.rd = sum(R, [])
            else:
                self.wr = R[0]
                self.rd = sum(R[1:], [])
        elif op.startswith("s_cmp") or op.startswith("s_cbranch") or op in ("s_branch", "s_waitcnt", "s_nop", "s_barrier", "s_endpgm", "s_setprio", "s_sleep"):
            self.rd = sum(R, [])
        elif op.startswith("v_cmp"):
            self.wr = R[0]
            self.rd = sum(R[1:], [])
        elif op.startswith("v_permlane") and "swap" in op:
            self.wr = R[0] + R[1]
            self.rd = R[0] + R[1]
        elif op.startswith(("v_fmac", "v_dot2c", "v_pk_fmac")):
            self.wr = R[0]
            self.rd = sum(R, [])
        elif op in ("v_add_co_u32", "v_addc_co_u32", "v_sub_co_u32"):
            self.wr = R[0] + R[1]
            self.rd = sum(R[2:], [])
        elif op.startswith("v_cndmask"):
            self.wr = R[0]
            self.rd = sum(R[1:], [])
            if len(ops) == 3:
                self.rd.append(("s", "vcc"))
        elif op == "s_setpc_b64":
            self.rd = R[0]
        else:
            self.wr = R[0] if R else []
            self.rd = sum(R[1:], [])
            if op.endswith("saveexec_b64"):
                self.wr = self.wr + [("s", "exec")]
        self.is_trans = op.split("_e")[0] in TRANS or op in TRANS
        self.is_dpp = "dpp" in text or "row_" in text or "quad_perm" in text
        m = re.match(r"s_nop (\d+)", text)
        self.states = int(m.group(1)) + 1 if m else 1


def trace(lines, loop_trips=2, take=None):
    take = take or set()
    labels = {ln[:-1]: i for i, ln in enumerate(lines) if ln.endswith(":")}
    out = []
    pc = 0
    cnt = {}
    steps = 0
    while pc < len(lines):
        ln = lines[pc]
        steps += 1
        assert steps < 2_000_000
        if ln.endswith(":") or ln.startswith(";"):
            pc += 1
            continue
        ins = Ins(ln)
        ins.pc = pc
        out.append(ins)
        if ins.op == "s_endpgm":
            break
        if ins.op == "s_branch":
            tgt = labels[ins.ops[0]]
            if tgt <= pc:
                k = cnt.get(pc, 0)
                if k >= loop_trips:
                    break
                cnt[pc] = k + 1
            pc = tgt
            continue
        if ins.op.startswith("s_cbranch"):
            tgt = labels[ins.ops[0]]
            if tgt <= pc:
                k = cnt.get(pc, 0)
                if k < loop_trips - 1:
                    cnt[pc] = k + 1
                    pc = tgt
                    continue
                cnt[pc] = 0
            elif ins.ops[0] in take:
                take = take - {ins.ops[0]}
                pc = tgt
                continue
        pc += 1
    return out


def check(kern, loop_trips=2, take=None, verbose=True):
    tr = trace(kern.lines, loop_trips, take)
    errs = []

    def err(i, msg):
        errs.append(f"{kern.name}: line {tr[i].pc}: {tr[i].text}   <- {msg}")

    WIN = 24
    for i, ins in enumerate(tr):
        dist = 0
        rd, wr = set(ins.rd), set(ins.wr)
        for j in range(i - 1, max(-1, i - WIN), -1):
            p = tr[j]
            need = 0
            pw = set(p.wr)
            if p.is_valu and ins.is_mfma and pw & rd:
                need = max(need, 2)
            if p.is_mfma:
                np_ = p.passes
                if ins.is_mfma:
                    if pw & (set(ins.srca) | set(ins.srcb)):
                        need = max(need, np_ + 4)
                    if pw & set(ins.srcc):
                        if not (p.wr == ins.srcc and p.passes == ins.passes):
                            need = max(need, np_ + 2)
                elif (ins.is_valu or ins.is_ds or ins.is_vmem) and pw & (rd | wr):
                    need = max(need, np_ + 4)
                if ins.is_valu and set(p.srcc) & wr:
                    need = max(need, np_ - 1)
            if p.is_valu and p.is_trans and ins.is_valu and not ins.is_trans and pw & rd:
                need = max(need, 1)
            if p.is_valu and p.is_trans and ins.is_valu and ins.is_trans and pw & rd:
                need = max(need, 1)
            if p.is_valu:
                sw = {r for r in pw if r[0] == "s"}
                if sw & rd:
                    if ins.is_vmem:
                        need = max(need, 5)
                    elif ins.is_valu:
                        need = max(need, 4 if ins.op.startswith(("v_readlane", "v_writelane")) else 2)
                vw = pw - sw
                if vw & rd:
                    if ins.op.startswith(("v_readfirstlane", "v_readlane")):
                        need = max(need, 1)
                    if ins.op.startswith("v_permlane") or ins.is_dpp:
                        need = max(need, 2)
                if ("s", "exec") in pw and (ins.is_mfma):
                    need = max(need, 4)
            if not p.is_valu and not p.is_mfma and ("s", "m0") in pw and ins.is_lds_dma:
                need = max(need, 1)
            if p.is_vmem and hasattr(p, "store_data") and len(p.store_data) >= 3 and set(p.store_data) & wr:
                need = max(need, 2 if ins.is_valu else 1)
            if need > dist:
                err(i, f"needs {need} wait states after '{p.text}' (has {dist})")
            dist += p.states
            if dist >= 20:
                break

    vmq, lgq = [], []
    for i, ins in enumerate(tr):
        if ins.op == "s_waitcnt":
            m = re.search(r"vmcnt\((\d+)\)", ins.text)
            if m:
                n = int(m.group(1))
                vmq = vmq[len(vmq) - n:] if n and len(vmq) > n else ([] if n == 0 else vmq)
            m = re.search(r"lgkmcnt\((\d+)\)", ins.text)
            if m:
                n = int(m.group(1))
                if n and any(x[0] == "smem" for x in lgq):
                    err(i, "counted lgkmcnt with SMEM outstanding")
                lgq = lgq[len(lgq) - n:] if n and len(lgq) > n else ([] if n == 0 else lgq)
            continue
        touched = set(ins.rd) | set(ins.wr)
        for q, nm in ((vmq, "vmcnt"), (lgq, "lgkmcnt")):
            for kind, regs, txt in q:
                hit = regs & touched
                if hit:
                    if (ins.is_vmem or ins.is_ds) and not (regs & set(ins.rd)) and kind == ("vm" if ins.is_vmem else "ds"):
                        continue
                    err(i, f"touches {sorted(hit)[:2]} pending on {nm} from '{txt}'")
        if ins.is_vmem:
            vmq.append(("vm", set(ins.wr), ins.text))
            if len(vmq) > 63:
                err(i, "more than 63 VMEM ops outstanding")
                vmq = vmq[-63:]
        elif ins.is_ds:
            lgq.append(("ds", set(ins.wr), ins.text))
            if len(lgq) > 15:
                pass
        elif ins.is_smem:
            lgq.append(("smem", set(ins.wr), ins.text))
    if verbose:
        nm = sum(1 for x in tr if x.is_mfma)
        print(f"[check] {kern.name}: {len(tr)} traced instrs, {nm} mfma, {len(errs)} problems")
    return errs
```

```python
from asmlib import *
from layout import *
from k_pre import srd

V_LANE = 1
V_T0 = 2
V_KA = 10
V_VA = 18
V_DK = 22
V_DV = 26
V_L = 28
V_E = 32
V_S = 40
V_NM = 104
V_P = 136
V_Q = 168
V_QACC = 40
V_WA = 232
V_HO = 240
V_WD = 241
A_O = 0
A_KF = 128
A_VF = 160
A_WF = 128
S_K, S_V, S_W, S_H, S_OO = 8, 12, 16, 20, 24
S_WOFF = 28
S_KT = 29
S_VT = 30
S_TMP = 31
S_LOOP = 32
S_SECOND = 33
S_WOFF8 = 34

KSLOT = lambda t: (t % 4) * 16384
VSLOT = lambda t: 65536 + (t % 4) * 16384
WREG = [0, 65536, 32768, 98304]
LDS_FLAG = 131072
ATTN_LDS = 131072 + 64
L_LIMIT = 2.0 ** 30


def S(par, qb):
    return V_S + (par * 2 + qb) * 16


def P(par, qb):
    return V_P + (par * 2 + qb) * 8


def O(qb, db):
    return A_O + (qb * 4 + db) * 16


def mf(d, A, B, C):
    return f"v_mfma_f32_32x32x16_bf16 {d}, {A}, {B}, {C}"


def qk_mfmas(par, use_negm=True):
    out = []
    for qb in range(2):
        for j in range(8):
            d = v(S(par, qb), 16)
            c = d if j else (v(V_NM + 16 * qb, 16) if use_negm else "0")
            out.append(mf(d, a(A_KF + 4 * j, 4), v(V_Q + (qb * 8 + j) * 4, 4), c))
    return out


def pv_mfmas(par):
    out = []
    for qb in range(2):
        for kh in range(2):
            for db in range(4):
                d = a(O(qb, db), 16)
                out.append(mf(d, a(A_VF + (db * 2 + kh) * 4, 4), v(P(par, qb) + 4 * kh, 4), d))
    return out


def k_reads(tile, half):
    return [f"ds_read_b128 {a(A_KF + 4 * j, 4)}, {v(V_KA + j)} offset:{KSLOT(tile) + half * 8192}" for j in range(8)]


def v_reads(tile, half):
    out = []
    for kh in range(2):
        for db in range(4):
            for p in range(2):
                off = (tile % 4) * 16384 + half * 8192 + kh * 4096 + p * 2048
                out.append(f"ds_read_b64_tr_b16 {a(A_VF + (db * 2 + kh) * 4 + 2 * p, 2)}, {v(V_VA + db)} offset:{off}")
    return out


def softmax_seq(par, qbs=(0, 1)):
    seq, pend = [], []
    g = 0
    for qb in qbs:
        for pr in range(8):
            t = V_E + 2 * (g % 2)
            s0 = S(par, qb) + 2 * pr
            seq.append(f"v_exp_f32 {v(t)}, {v(s0)}")
            if pend:
                seq.append(pend.pop(0))
            seq.append(f"v_exp_f32 {v(t + 1)}, {v(s0 + 1)}")
            seq += pend
            pend = [f"v_add_f32 {v(V_L + 2 * qb)}, {v(V_L + 2 * qb)}, {v(t)}",
                    f"v_add_f32 {v(V_L + 2 * qb + 1)}, {v(V_L + 2 * qb + 1)}, {v(t + 1)}",
                    f"v_cvt_pk_bf16_f32 {v(P(par, qb) + pr)}, {v(t)}, {v(t + 1)}"]
            g += 1
    seq.append("s_nop 0")
    seq += pend
    return seq


def dma_k(k, slot_tile, tag):
    out = [f"s_add_u32 m0, {s(S_WOFF)}, {KSLOT(slot_tile)}"]
    for i in range(4):
        out.append((f"buffer_load_dwordx4 {v(V_DK + i)}, {s(S_K, 4)}, {s(S_KT)} offen offset:{i * 1024} lds", tag))
    return out


def dma_v(k, slot_tile, tag):
    out = [f"s_add_u32 m0, {s(S_WOFF)}, {VSLOT(slot_tile)}"]
    for i in range(4):
        out.append((f"buffer_load_dwordx4 {v(V_DV)}, {s(S_V, 4)}, {s(S_VT)} offen offset:{i * 1024} lds", tag))
    return out


def adv(sreg):
    return [f"s_add_u32 {s(sreg)}, {s(sreg)}, 16384", f"s_min_u32 {s(sreg)}, {s(sreg)}, {31 * 16384}"]


def emit_plain(k, items):
    for it in items:
        if isinstance(it, tuple):
            k.vmem(it[0], it[1])
        else:
            k.e(it)


def strip_tags(k, items):
    emit_plain(k, items)


def iteration(k, i, last_qk=63, last_sm=63):
    par_pv = i & 1
    par_sm = (i + 1) & 1
    par_qk = i & 1
    do_qk = i + 2 <= last_qk
    do_sm = i + 1 <= last_sm
    mf_list = pv_mfmas(par_pv) + (qk_mfmas(par_qk) if do_qk else [])
    n = len(mf_list)
    pre, post = {}, {}

    def add(dct, g, x):
        dct.setdefault(g, []).append(x)

    add(pre, 0, "s_waitcnt lgkmcnt(0)")
    if do_qk:
        kr = k_reads(((i + 2) >> 1), i & 1)
        for r, x in enumerate(kr):
            add(post, r * 3 // 2, x)
        add(pre, 16, "s_waitcnt lgkmcnt(0)")
    odd = i & 1
    t = (i + 1) >> 1
    vr = v_reads((i + 1) >> 1, (i + 1) & 1) if i + 1 <= 63 else []
    if do_qk:
        if odd:
            add(pre, 16, "s_waitcnt vmcnt(16)")
            add(pre, 16, "s_barrier")
        for r, x in enumerate(vr):
            add(post, 16 + (r * 13) // 16, x)
        if odd:
            d = dma_k(k, t + 4, None)
            add(post, 17, d[0])
            for q in range(4):
                add(post, 18 + 3 * q, d[1 + q][0])
            for q, x in enumerate(adv(S_KT)):
                add(post, 29 + q, x)
        else:
            d = dma_v(k, (i >> 1) + 3, None)
            add(post, 1, d[0])
            for q in range(4):
                add(post, 2 + 3 * q, d[1 + q][0])
            for q, x in enumerate(adv(S_VT)):
                add(post, 13 + q, x)
    else:
        if vr:
            if odd:
                add(pre, 16, "s_waitcnt lgkmcnt(0)")
                add(pre, 16, "s_waitcnt vmcnt(0)")
                add(pre, 16, "s_barrier")
            for x in vr:
                add(pre, 16, x)
    flow = softmax_seq(par_sm) if do_sm else []
    hi = n if do_qk else n
    out = interleave(mf_list, pre, post, flow, 0, hi)
    for x in out:
        k.e(x)


def gen_attn():
    k = Kern("attn_kernel", vgpr=256, agpr=256, sgpr=64)
    e = k.e
    e("s_cmp_ge_u32 s2, 256")
    e("s_cbranch_scc1 L_at_end")
    k.stamp()
    e("s_load_dwordx4 s[36:39], s[0:1], 8")
    e("s_load_dwordx2 s[40:41], s[0:1], 24")
    e("s_load_dwordx2 s[42:43], s[0:1], 112")
    e(f"v_and_b32 {v(V_LANE)}, 63, v0")
    e("v_lshrrev_b32 v2, 6, v0")
    e("s_nop 0")
    e("v_readfirstlane_b32 s44, v2")
    e("s_and_b32 s45, s2, 7")
    e("s_lshr_b32 s46, s2, 6")
    e("s_lshl_b32 s46, s46, 3")
    e("s_add_u32 s45, s45, s46")
    e("s_lshr_b32 s46, s2, 3")
    e("s_and_b32 s46, s46, 7")
    e(f"s_lshl_b32 {s(S_WOFF)}, s44, 12")
    e(f"s_lshl_b32 {s(S_WOFF8)}, s44, 13")
    e(f"s_mov_b32 {s(S_SECOND)}, 0")
    e("s_waitcnt lgkmcnt(0)")
    e("s_lshl_b32 s47, s45, 19")
    srd(k, S_K, 36, 0, 524288, add_sgpr=47)
    srd(k, S_V, 38, 0, 524288, add_sgpr=47)
    e("s_lshl_b32 s47, s45, 8")
    srd(k, S_W, 40, 0, 0, add_sgpr=47)
    e(f"s_sub_u32 {s(S_W + 2)}, {512 * 8192}, s47")
    e("s_lshl_b32 s48, s46, 3")
    e("s_lshl_b32 s49, s44, 1")
    e("s_add_u32 s48, s48, s49")
    e("s_lshl_b32 s47, s48, 15")
    srd(k, S_H, 42, OFF_H0, 65536, add_sgpr=47)
    e("s_lshl_b32 s47, s48, 18")
    e("s_lshl_b32 s49, s45, 13")
    e("s_add_u32 s47, s47, s49")
    srd(k, S_OO, 42, OFF_O, 262144 + 8192, add_sgpr=47)

    L = V_LANE
    e(f"v_lshrrev_b32 v2, 4, {v(L)}")
    e(f"v_and_b32 v3, 15, {v(L)}")
    e("v_lshlrev_b32 v4, 2, v2")
    e("v_xor_b32 v4, v4, v3")
    e("v_lshlrev_b32 v5, 4, v4")
    e(f"v_lshl_add_u32 {v(V_WD)}, v2, 13, v5")
    e("s_lshl_b32 s47, s44, 18")
    e(f"v_add_u32 {v(V_WD)}, s47, {v(V_WD)}")
    e(f"v_lshl_add_u32 {v(V_DV)}, v2, 8, v5")
    e(f"v_add_u32 {v(V_DV)}, {s(S_WOFF)}, {v(V_DV)}")
    for i in range(4):
        e(f"v_add_u32 v6, {4 * i}, v2")
        e("v_xor_b32 v6, v6, v3")
        e("v_lshlrev_b32 v6, 4, v6")
        e(f"v_lshl_add_u32 {v(V_DK + i)}, v2, 8, v6")
        e(f"v_add_u32 {v(V_DK + i)}, {s(S_WOFF)}, {v(V_DK + i)}")
    e(f"v_lshlrev_b32 {v(V_HO)}, 4, {v(L)}")
    def w_dma(c):
        items = []
        for i in range(8):
            if i % 4 == 0:
                items.append(f"s_add_u32 m0, {s(S_WOFF8)}, {WREG[c] + (i & 4) * 1024}")
            items.append(f"s_mov_b32 {s(S_TMP)}, {(128 * c + 4 * i) * 8192 - (i & 3) * 1024}")
            items.append((f"buffer_load_dwordx4 {v(V_WD)}, {s(S_W, 4)}, {s(S_TMP)} offen offset:{(i & 3) * 1024} lds", f"W{c}"))
        return items

    def hreg(kc, qb):
        return A_O + ((kc % 16) * 2 + qb) * 4

    def h_load(kc, qb):
        return [f"s_mov_b32 {s(S_TMP + 20)}, {qb * 32768 + (kc & ~3) * 1024}",
                (f"buffer_load_dwordx4 {a(hreg(kc, qb), 4)}, {v(V_HO)}, {s(S_H, 4)}, {s(S_TMP + 20)} offen offset:{(kc & 3) * 1024}", f"h{kc}")]

    def h_loads(c):
        items = []
        for kc in range(8 * c, 8 * c + 8):
            for qb in range(2):
                items += h_load(kc, qb)
        return items

    emit_plain(k, w_dma(0))
    emit_plain(k, h_loads(0))
    emit_plain(k, w_dma(1))
    emit_plain(k, h_loads(1))
    emit_plain(k, w_dma(2))
    e(f"v_and_b32 v4, 31, {v(L)}")
    e(f"v_lshrrev_b32 v5, 5, {v(L)}")
    e("v_and_b32 v6, 15, v4")
    e("v_xor_b32 v6, v6, v5")
    for j in range(8):
        e(f"v_xor_b32 v7, {2 * j}, v6")
        e("v_lshlrev_b32 v7, 4, v7")
        e(f"v_lshl_add_u32 {v(V_KA + j)}, v4, 8, v7")
    e("v_lshrrev_b32 v6, 2, v3")
    e(f"v_and_b32 v7, 3, {v(L)}")
    e("v_and_b32 v8, 1, v2")
    e("v_and_b32 v9, 1, v7")
    e("v_lshl_add_u32 v9, v8, 1, v9")
    e("v_lshlrev_b32 v9, 4, v9")
    e("v_lshrrev_b32 v7, 1, v7")
    e("v_lshl_add_u32 v9, v7, 3, v9")
    e("v_lshl_add_u32 v9, v6, 8, v9")
    for db in range(4):
        e(f"v_xor_b32 v7, {db}, v6")
        e("v_lshl_add_u32 v7, v7, 6, v9")
        e(f"v_lshl_add_u32 {v(V_VA + db)}, v5, 10, v7")
        e(f"v_add_u32 {v(V_VA + db)}, 65536, {v(V_VA + db)}")
        e(f"v_lshl_add_u32 {v(V_WA + db)}, v5, 11, v7")
        e(f"v_add_u32 {v(V_WA + 4 + db)}, 65536, {v(V_WA + db)}")
    for q in range(4):
        e(f"v_mov_b32 {v(V_L + q)}, 0")
    e(f"v_mov_b32 v2, 0")
    e(f"v_mov_b32 v3, {LDS_FLAG}")
    e("ds_write_b32 v3, v2")

    def w_reads(ks):
        c, kl = ks >> 3, ks & 7
        base = WREG[c] & 0xFFFF
        hi = 4 if WREG[c] >= 65536 else 0
        out = []
        for db in range(4):
            for p in range(2):
                out.append(f"ds_read_b64_tr_b16 {a(A_WF + (ks & 1) * 16 + db * 4 + 2 * p, 2)}, {v(V_WA + hi + db)} offset:{base + kl * 4096 + p * 1024}")
        return out

    def qacc(db, qb):
        return V_QACC + (db * 2 + qb) * 16

    e(k.vm_wait(["W0"]))
    e("s_waitcnt lgkmcnt(0)")
    e("s_barrier")
    k.stamp()
    emit_plain(k, w_reads(0))
    e(f"s_mov_b32 {s(S_KT)}, 0")
    e(f"s_mov_b32 {s(S_VT)}, 0")
    for ks in range(32):
        c, kl = ks >> 3, ks & 7
        mfs = []
        for db in range(4):
            for qb in range(2):
                d = v(qacc(db, qb), 16)
                mfs.append(mf(d, a(A_WF + (ks & 1) * 16 + db * 4, 4), a(hreg(ks, qb), 4), d if ks else "0"))
        pre, post = {}, {}
        extra = []
        w = k.vm_wait([f"h{ks}"])
        pre[0] = ["s_waitcnt lgkmcnt(0)"] + ([w] if w else [])
        nxt = w_reads(ks + 1) if ks + 1 < 32 else []
        if kl == 7 and ks + 1 < 32:
            w2 = k.vm_wait([f"W{c + 1}"])
            pre[0] += ([w2] if w2 else []) + ["s_barrier"]
        if kl == 0 and c == 0:
            extra += w_dma(3)
        if 1 <= ks and ks + 15 < 32:
            for qb in range(2):
                extra += h_load(ks + 15, qb)
        if kl == 0 and c == 1:
            extra += dma_k(k, 0, "K0") + adv(S_KT) + dma_k(k, 1, "K1") + adv(S_KT)
        if kl == 0 and c == 2:
            extra += dma_v(k, 0, "V0") + adv(S_VT) + dma_v(k, 1, "V1") + adv(S_VT)
        if kl == 0 and c == 3:
            extra += dma_k(k, 2, "K2") + adv(S_KT) + dma_k(k, 3, "K3") + adv(S_KT)
        zero = []
        if ks >= 17:
            for qb in range(2):
                zero += [f"v_accvgpr_write_b32 {a(hreg(ks - 1, qb) + q)}, 0" for q in range(4)]
        stream = []
        gaps = {g: [] for g in range(8)}
        for r, x in enumerate(nxt):
            gaps[min(r, 5)].append(x)
        for r, x in enumerate(extra):
            gaps[min(7, r * 8 // max(1, len(extra)))].append(x)
        for r, x in enumerate(zero):
            gaps[r].append(x)
        for x in pre[0]:
            e(x)
        for g in range(8):
            e(mfs[g])
            emit_plain(k, gaps[g])
    e("s_barrier")
    emit_plain(k, dma_v(k, 2, "V2") + adv(S_VT))
    for qb in range(2):
        for q in range(4):
            e(f"v_accvgpr_write_b32 {a(hreg(31, qb) + q)}, 0")
    e("s_nop 4")
    order = [(db, qb) for db in range(4) for qb in range(2)]
    for db, qb in order:
        for kap in range(2):
            for m in range(4):
                src = qacc(db, qb) + 8 * kap + 2 * m
                e(f"v_cvt_pk_bf16_f32 {v(V_Q + (qb * 8 + 2 * db + kap) * 4 + m)}, {v(src)}, {v(src + 1)}")

    k.stamp()
    e(k.vm_wait(["K0"]))
    e("s_barrier")
    emit_plain(k, k_reads(0, 0))
    e("s_waitcnt lgkmcnt(0)")
    for x in qk_mfmas(0, use_negm=False):
        e(x)
    emit_plain(k, k_reads(0, 1))
    for qb in range(2):
        if qb == 0:
            e("s_nop 3")
        b = S(0, qb)
        m = V_T0 + qb
        if qb == 1:
            e("s_nop 3")
        e(f"v_max3_f32 {v(m)}, {v(b)}, {v(b + 1)}, {v(b + 2)}")
        for q in range(3, 15, 2):
            e(f"v_max3_f32 {v(m)}, {v(m)}, {v(b + q)}, {v(b + q + 1)}")
        e(f"v_max_f32 {v(m)}, {v(m)}, {v(b + 15)}")
    for qb in range(2):
        m = V_T0 + qb
        e(f"v_mov_b32 {v(V_T0 + 2 + qb)}, {v(m)}")
    e("s_nop 1")
    for qb in range(2):
        e(f"v_permlane32_swap_b32 {v(V_T0 + qb)}, {v(V_T0 + 2 + qb)}")
    e("s_nop 1")
    for qb in range(2):
        e(f"v_max_f32 {v(V_T0 + qb)}, {v(V_T0 + qb)}, {v(V_T0 + 2 + qb)}")
        e(f"v_sub_f32 {v(V_T0 + qb)}, 0, {v(V_T0 + qb)}")
    for qb in range(2):
        for q in range(16):
            e(f"v_mov_b32 {v(V_NM + 16 * qb + q)}, {v(V_T0 + qb)}")
        for q in range(16):
            e(f"v_add_f32 {v(S(0, qb) + q)}, {v(S(0, qb) + q)}, {v(V_T0 + qb)}")
    k.label("L_at_step1")
    e("s_waitcnt lgkmcnt(0)")
    out = interleave(qk_mfmas(1), {}, {}, softmax_seq(0))
    for x in out:
        e(x)
    e("s_waitcnt vmcnt(16)")
    e("s_barrier")
    emit_plain(k, v_reads(0, 0))
    emit_plain(k, [x[0] if isinstance(x, tuple) else x for x in dma_k(k, 4, None)] + adv(S_KT))

    k.stamp()
    e(f"s_mov_b32 {s(S_LOOP)}, 7")
    k.label("L_at_loop")
    for i in range(8):
        iteration(k, i)
    e(f"s_sub_u32 {s(S_LOOP)}, {s(S_LOOP)}, 1")
    e(f"s_cmp_lg_u32 {s(S_LOOP)}, 0")
    e("s_cbranch_scc1 L_at_loop")
    for i in range(56, 64):
        iteration(k, i)

    k.stamp()
    for qb in range(2):
        e(f"v_add_f32 {v(V_L + 2 * qb)}, {v(V_L + 2 * qb)}, {v(V_L + 2 * qb + 1)}")
    for qb in range(2):
        e(f"v_mov_b32 {v(V_L + 2 * qb + 1)}, {v(V_L + 2 * qb)}")
    e("s_nop 1")
    for qb in range(2):
        e(f"v_permlane32_swap_b32 {v(V_L + 2 * qb)}, {v(V_L + 2 * qb + 1)}")
    e("s_nop 1")
    for qb in range(2):
        e(f"v_add_f32 {v(V_L + 2 * qb)}, {v(V_L + 2 * qb)}, {v(V_L + 2 * qb + 1)}")
    e(f"v_max_f32 v2, {v(V_L)}, {v(V_L + 2)}")
    e(f"v_mov_b32 v3, {f32hex(L_LIMIT)}")
    e("v_cmp_nlt_f32 vcc, v2, v3")
    e(f"v_cmp_u_f32 s[50:51], {v(V_L)}, {v(V_L + 2)}")
    e("s_nop 1")
    e("s_or_b64 vcc, vcc, s[50:51]")
    e("s_cbranch_vccz L_at_ok")
    e("v_mov_b32 v2, 1")
    e(f"v_mov_b32 v3, {LDS_FLAG}")
    e("ds_write_b32 v3, v2")
    k.label("L_at_ok")
    e("s_waitcnt lgkmcnt(0) vmcnt(0)")
    e("s_barrier")
    e(f"v_mov_b32 v3, {LDS_FLAG}")
    e("ds_read_b32 v2, v3")
    e("s_waitcnt lgkmcnt(0)")
    e("v_readfirstlane_b32 s50, v2")
    e(f"s_xor_b32 s51, {s(S_SECOND)}, 1")
    e("s_and_b32 s50, s50, s51")
    e("s_cmp_eq_u32 s50, 1")
    e("s_cbranch_scc1 L_at_redo")
    for qb in range(2):
        e(f"v_rcp_f32 {v(V_L + 2 * qb)}, {v(V_L + 2 * qb)}")
    for qb in range(2):
        for db in range(4):
            for kap in range(2):
                j = 2 * db + kap
                t = V_S + ((qb * 8 + j) % 4) * 12
                for q in range(8):
                    e(f"v_accvgpr_read_b32 {v(t + q)}, {a(O(qb, db) + 8 * kap + q)}")
                for q in range(8):
                    e(f"v_mul_f32 {v(t + q)}, {v(V_L + 2 * qb)}, {v(t + q)}")
                for m in range(4):
                    e(f"v_cvt_pk_bf16_f32 {v(t + 8 + m)}, {v(t + 2 * m)}, {v(t + 2 * m + 1)}")
                if (j & 3) == 0:
                    e(f"s_mov_b32 {s(S_TMP)}, {qb * 262144 + (j & 4) * 1024}")
                e(f"buffer_store_dwordx4 {v(t + 8, 4)}, {v(V_HO)}, {s(S_OO, 4)}, {s(S_TMP)} offen offset:{(j & 3) * 1024}")
    k.stamp()
    if Kern.STAMPS:
        e("s_waitcnt vmcnt(0)")
    k.stamp()
    k.stamp_flush(1)
    e("s_endpgm")

    k.label("L_at_redo")
    e(f"s_mov_b32 {s(S_SECOND)}, 1")
    e(f"s_mov_b32 {s(S_KT)}, 0")
    e(f"s_mov_b32 {s(S_LOOP)}, 32")
    e(f"v_mov_b32 {v(V_T0)}, 0xff800000")
    e(f"v_mov_b32 {v(V_T0 + 1)}, 0xff800000")
    k.label("L_at_maxloop")
    e("s_barrier")
    emit_plain(k, [x[0] if isinstance(x, tuple) else x for x in dma_k(k, 0, None)])
    e(f"s_add_u32 {s(S_KT)}, {s(S_KT)}, 16384")
    e("s_waitcnt vmcnt(0)")
    e("s_barrier")
    for half in range(2):
        emit_plain(k, k_reads(0, half))
        e("s_waitcnt lgkmcnt(0)")
        for x in qk_mfmas(0, use_negm=False):
            e(x)
        e("s_nop 15")
        for qb in range(2):
            b, m = S(0, qb), V_T0 + qb
            for q in range(0, 16, 2):
                e(f"v_max3_f32 {v(m)}, {v(m)}, {v(b + q)}, {v(b + q + 1)}")
    e(f"s_sub_u32 {s(S_LOOP)}, {s(S_LOOP)}, 1")
    e(f"s_cmp_lg_u32 {s(S_LOOP)}, 0")
    e("s_cbranch_scc1 L_at_maxloop")
    for qb in range(2):
        e(f"v_mov_b32 {v(V_T0 + 2 + qb)}, {v(V_T0 + qb)}")
    e("s_nop 1")
    for qb in range(2):
        e(f"v_permlane32_swap_b32 {v(V_T0 + qb)}, {v(V_T0 + 2 + qb)}")
    e("s_nop 1")
    for qb in range(2):
        e(f"v_max_f32 {v(V_T0 + qb)}, {v(V_T0 + qb)}, {v(V_T0 + 2 + qb)}")
        e(f"v_sub_f32 {v(V_T0 + qb)}, 0, {v(V_T0 + qb)}")
    for qb in range(2):
        for q in range(16):
            e(f"v_mov_b32 {v(V_NM + 16 * qb + q)}, {v(V_T0 + qb)}")
    for q in range(128):
        e(f"v_accvgpr_write_b32 {a(q)}, 0")
    for q in range(4):
        e(f"v_mov_b32 {v(V_L + q)}, 0")
    e("s_barrier")
    e(f"s_mov_b32 {s(S_KT)}, 0")
    e(f"s_mov_b32 {s(S_VT)}, 0")
    plain = lambda items: [x[0] if isinstance(x, tuple) else x for x in items]
    emit_plain(k, plain(dma_k(k, 0, None) + adv(S_KT) + dma_k(k, 1, None) + adv(S_KT)))
    emit_plain(k, plain(dma_v(k, 0, None) + adv(S_VT) + dma_v(k, 1, None) + adv(S_VT)))
    emit_plain(k, plain(dma_k(k, 2, None) + adv(S_KT) + dma_k(k, 3, None) + adv(S_KT)))
    emit_plain(k, plain(dma_v(k, 2, None) + adv(S_VT)))
    e("s_waitcnt vmcnt(24)")
    e("s_barrier")
    emit_plain(k, k_reads(0, 0))
    e("s_waitcnt lgkmcnt(0)")
    for x in qk_mfmas(0):
        e(x)
    emit_plain(k, k_reads(0, 1))
    e("s_nop 7")
    e("s_branch L_at_step1")
    k.label("L_at_end")
    e("s_endpgm")
    return k
```

```python
from asmlib import *
from layout import *


def srd(k, base, ptr_lo, add_bytes, nbytes, add_sgpr=None):
    k.e(f"s_add_u32 {s(base)}, {s(ptr_lo)}, {add_bytes}")
    k.e(f"s_addc_u32 {s(base + 1)}, {s(ptr_lo + 1)}, 0")
    if add_sgpr is not None:
        k.e(f"s_add_u32 {s(base)}, {s(base)}, {s(add_sgpr)}")
        k.e(f"s_addc_u32 {s(base + 1)}, {s(base + 1)}, 0")
    k.e(f"s_mov_b32 {s(base + 2)}, {nbytes}")
    k.e(f"s_mov_b32 {s(base + 3)}, 0x00020000")


def round_bf16(k, dst, src, tmp):
    k.e(f"v_cvt_pk_bf16_f32 {v(tmp)}, {v(src)}, {v(src)}")
    k.e(f"v_lshlrev_b32 {v(dst)}, 16, {v(tmp)}")


def gen_pre():
    k = Kern("pre_kernel", vgpr=248, agpr=0, sgpr=64)
    LDS_SC = 0
    LDS_RED = 2048
    LDS_PAR = 2048 + 16384
    LDS_ST = LDS_PAR + 512
    k.e(f"s_cmp_ge_u32 s2, {PRE_WGS}")
    k.e("s_cbranch_scc1 L_pre_end")
    k.stamp()
    k.e("s_load_dwordx2 s[4:5], s[0:1], 0")
    k.e("s_load_dwordx2 s[6:7], s[0:1], 64")
    k.e("s_load_dwordx4 s[8:11], s[0:1], 80")
    k.e("s_load_dwordx2 s[12:13], s[0:1], 112")
    k.e("v_lshrrev_b32 v1, 3, v0")
    k.e("v_and_b32 v2, 7, v0")
    k.e("v_and_b32 v3, 63, v0")
    k.e("v_lshrrev_b32 v4, 6, v0")
    k.e("s_waitcnt lgkmcnt(0)")
    k.stamp()
    srd(k, 16, 8, 0, 1024)
    srd(k, 20, 10, 0, 512 * 6144)
    srd(k, 24, 4, 0, 2048 * 1024)
    srd(k, 28, 12, OFF_H0, SZ_ACT)
    srd(k, 32, 12, OFF_MOD, 16384)
    srd(k, 36, 6, 0, 512 * 3584)
    k.e("v_lshlrev_b32 v5, 2, v0")
    k.e("buffer_load_dword v6, v5, s[16:19], 0 offen")
    k.e("s_cmp_ge_u32 s2, 256")
    k.e("s_cbranch_scc1 L_pre_roleBC")

    k.e("s_lshr_b32 s40, s2, 3")
    k.e("s_and_b32 s41, s2, 7")
    k.e("s_mov_b32 s42, 6144")
    k.e("v_mul_lo_u32 v7, v1, s42")
    k.e("v_lshlrev_b32 v8, 4, v2")
    k.e("s_lshl_b32 s43, s41, 7")
    k.e("v_add3_u32 v7, v7, v8, s43")
    WA = 64
    for i in range(16):
        k.e(f"s_mov_b32 s44, {i * 32 * 6144}")
        k.e(f"buffer_load_dwordx4 {v(WA + 4 * i, 4)}, v7, s[20:23], s44 offen")
        k.e(f"buffer_load_dwordx4 {v(WA + 64 + 4 * i, 4)}, v7, s[20:23], s44 offen offset:1024")
    k.e("v_and_b32 v9, 15, v3")
    k.e("v_lshrrev_b32 v10, 4, v3")
    k.e("v_lshl_add_u32 v11, v4, 4, v9")
    k.e("s_lshl_b32 s45, s40, 16")
    k.e("v_lshlrev_b32 v12, 10, v11")
    k.e("v_lshl_add_u32 v12, v10, 4, v12")
    k.e("v_add_u32 v12, s45, v12")
    XS = 192
    k.e("s_waitcnt vmcnt(32)")
    k.stamp()
    silu_to_lds(k, LDS_SC)
    for j in range(8):
        k.e(f"buffer_load_dwordx4 {v(XS + 4 * j, 4)}, v12, s[24:27], 0 offen offset:{j * 64}")
    k.e("v_and_b32 v13, 31, v3")
    k.e("v_lshrrev_b32 v14, 5, v3")
    k.e("v_lshrrev_b32 v15, 1, v4")
    k.e("v_and_b32 v16, 1, v4")
    k.e("v_lshl_add_u32 v17, v15, 5, v13")
    k.e("v_lshlrev_b32 v18, 10, v17")
    k.e("v_lshl_add_u32 v18, v16, 6, v18")
    k.e("v_lshl_add_u32 v18, v14, 4, v18")
    k.e("s_add_u32 s46, s45, s43")
    k.e("v_add_u32 v18, s46, v18")
    k.e(f"buffer_load_dwordx4 v[224:227], v18, s[24:27], 0 offen")
    k.e(f"buffer_load_dwordx4 v[228:231], v18, s[24:27], 0 offen offset:32")
    k.e("s_waitcnt lgkmcnt(0)")
    k.e("s_barrier")
    k.e("v_lshlrev_b32 v19, 2, v1")
    SV = 32
    for i in range(16):
        k.e(f"ds_read_b32 {v(SV + i)}, v19 offset:{LDS_SC + i * 128}")
    ACC = 48
    for j in range(16):
        k.e(f"v_mov_b32 {v(ACC + j)}, 0")
    k.e("s_waitcnt lgkmcnt(0)")
    for i in range(16):
        k.e(f"s_waitcnt vmcnt({min(63, 30 - 2 * i + 10)})")
        gemv_step(k, WA + 4 * i, ACC, SV + i)
        gemv_step(k, WA + 64 + 4 * i, ACC + 8, SV + i)
    k.stamp()
    k.e("v_lshlrev_b32 v20, 9, v1")
    k.e("v_lshl_add_u32 v20, v2, 5, v20")
    k.e(f"ds_write_b128 v20, {v(ACC, 4)} offset:{LDS_RED}")
    k.e(f"ds_write_b128 v20, {v(ACC + 4, 4)} offset:{LDS_RED + 16}")
    k.e(f"ds_write_b128 v20, {v(ACC + 8, 4)} offset:{LDS_RED + 256}")
    k.e(f"ds_write_b128 v20, {v(ACC + 12, 4)} offset:{LDS_RED + 272}")
    k.e("v_mov_b32 v21, 0")
    k.e("v_mov_b32 v22, 0")
    k.e("v_mov_b32 v23, 0x3f803f80")
    k.e("s_waitcnt vmcnt(2)")
    for j in range(32):
        k.e(f"v_dot2c_f32_bf16 v21, {v(XS + j)}, v23")
        k.e(f"v_dot2c_f32_bf16 v22, {v(XS + j)}, {v(XS + j)}")
    k.e("s_nop 1")
    for j in range(8):
        k.e(f"buffer_load_dwordx4 {v(XS + 4 * j, 4)}, v12, s[24:27], 0 offen offset:{(8 + j) * 64}")
    k.e("s_waitcnt vmcnt(0)")
    for j in range(32):
        k.e(f"v_dot2c_f32_bf16 v21, {v(XS + j)}, v23")
        k.e(f"v_dot2c_f32_bf16 v22, {v(XS + j)}, {v(XS + j)}")
    k.e("v_lshlrev_b32 v24, 5, v11")
    k.e("v_lshl_add_u32 v24, v10, 3, v24")
    k.e("s_nop 1")
    k.e("v_mov_b32 v26, v21")
    k.e("v_mov_b32 v27, v22")
    k.e(f"ds_write_b64 v24, v[26:27] offset:{LDS_ST}")
    k.e("s_waitcnt lgkmcnt(0)")
    k.e("s_barrier")
    k.stamp()
    k.e("v_cmp_gt_u32 vcc, 128, v0")
    k.e("s_and_saveexec_b64 s[48:49], vcc")
    k.e("s_cbranch_execz L_pre_A_nored")
    k.e("v_lshlrev_b32 v25, 2, v0")
    for g in range(32):
        k.e(f"ds_read_b32 {v(WA + g)}, v25 offset:{LDS_RED + g * 512}")
    k.e("s_waitcnt lgkmcnt(0)")
    for g in range(1, 32):
        k.e(f"v_add_f32 {v(WA)}, {v(WA)}, {v(WA + g)}")
    round_bf16(k, WA, WA, WA + 1)
    k.e(f"v_add_f32 {v(WA + 2)}, 1.0, {v(WA)}")
    round_bf16(k, WA + 2, WA + 2, WA + 1)
    k.e("v_cmp_le_u32 vcc, 64, v0")
    k.e("s_nop 1")
    k.e(f"v_cndmask_b32 {v(WA)}, {v(WA)}, {v(WA + 2)}, vcc")
    k.e(f"ds_write_b32 v25, {v(WA)} offset:{LDS_PAR}")
    k.label("L_pre_A_nored")
    k.e("s_mov_b64 exec, s[48:49]")
    k.e("s_waitcnt lgkmcnt(0)")
    k.e("s_barrier")
    k.e("v_lshlrev_b32 v24, 5, v17")
    k.e(f"ds_read_b128 v[32:35], v24 offset:{LDS_ST}")
    k.e(f"ds_read_b128 v[36:39], v24 offset:{LDS_ST + 16}")
    k.e("v_lshlrev_b32 v25, 7, v16")
    k.e("v_lshl_add_u32 v25, v14, 5, v25")
    for i in range(2):
        k.e(f"ds_read_b128 {v(64 + 16 * i, 4)}, v25 offset:{LDS_PAR + 64 * i}")
        k.e(f"ds_read_b128 {v(68 + 16 * i, 4)}, v25 offset:{LDS_PAR + 64 * i + 16}")
        k.e(f"ds_read_b128 {v(72 + 16 * i, 4)}, v25 offset:{LDS_PAR + 256 + 64 * i}")
        k.e(f"ds_read_b128 {v(76 + 16 * i, 4)}, v25 offset:{LDS_PAR + 256 + 64 * i + 16}")
    k.e("s_waitcnt lgkmcnt(0)")
    k.e("v_add_f32 v32, v32, v34")
    k.e("v_add_f32 v36, v36, v38")
    k.e("v_add_f32 v33, v33, v35")
    k.e("v_add_f32 v37, v37, v39")
    k.e("v_add_f32 v32, v32, v36")
    k.e("v_add_f32 v33, v33, v37")
    k.e(f"v_mul_f32 v32, {1.0 / 512!r}, v32")
    k.e(f"v_mul_f32 v33, {1.0 / 512!r}, v33")
    k.e("v_fma_f32 v33, -v32, v32, v33")
    k.e("v_max_f32 v33, 0, v33")
    k.e("v_add_f32 v33, 0x3727c5ac, v33")
    k.e("v_rsq_f32 v33, v33")
    k.e("s_nop 0")
    k.e("v_mul_f32 v34, v32, v33")
    k.e(f"s_mov_b32 s50, {f32hex(ATTN_SCALE)}")
    k.e("s_lshl_b32 s51, s40, 16")
    k.e("s_lshl_b32 s52, s41, 12")
    k.e("s_add_u32 s51, s51, s52")
    k.e("v_lshlrev_b32 v26, 15, v15")
    k.e("v_lshl_add_u32 v26, v16, 11, v26")
    k.e("v_lshl_add_u32 v26, v3, 4, v26")
    k.e("v_add_u32 v26, s51, v26")
    for i in range(2):
        xr = 224 + 4 * i
        sa, c1 = 64 + 16 * i, 72 + 16 * i
        for d in range(4):
            k.e(f"v_lshlrev_b32 v40, 16, {v(xr + d)}")
            k.e(f"v_and_b32 v41, 0xffff0000, {v(xr + d)}")
            k.e("v_fma_f32 v40, v40, v33, -v34")
            k.e("v_fma_f32 v41, v41, v33, -v34")
            k.e(f"v_fma_f32 v40, v40, {v(c1 + 2 * d)}, {v(sa + 2 * d)}")
            k.e(f"v_fma_f32 v41, v41, {v(c1 + 2 * d + 1)}, {v(sa + 2 * d + 1)}")
            k.e("v_mul_f32 v40, s50, v40")
            k.e("v_mul_f32 v41, s50, v41")
            k.e(f"v_cvt_pk_bf16_f32 {v(44 + 4 * i + d)}, v40, v41")
        k.e(f"buffer_store_dwordx4 {v(44 + 4 * i, 4)}, v26, s[28:31], 0 offen offset:{1024 * i}")
    k.stamp()
    if Kern.STAMPS:
        k.e("s_waitcnt vmcnt(0)")
    k.stamp()
    k.stamp_flush(0)
    k.e("s_branch L_pre_end")

    k.label("L_pre_roleBC")
    k.e("s_sub_u32 s40, s2, 256")
    k.e("s_cmp_ge_u32 s40, 32")
    k.e("s_cbranch_scc1 L_pre_roleC")
    k.e("s_mov_b32 s20, s20")
    k.e("s_lshl_b32 s43, s40, 7")
    k.e("s_add_u32 s43, s43, 2048")
    k.e("s_mov_b32 s42, 6144")
    k.e("s_mov_b32 s53, 0")
    k.e("s_mov_b32 s56, s20")
    k.e("s_mov_b32 s57, s21")
    k.e("s_mov_b32 s58, s22")
    k.e("s_mov_b32 s59, s23")
    k.e("s_lshl_b32 s54, s40, 8")
    k.e("s_branch L_pre_BC_go")
    k.label("L_pre_roleC")
    k.e("s_sub_u32 s40, s40, 32")
    k.e("s_lshl_b32 s43, s40, 7")
    k.e("s_mov_b32 s42, 3584")
    k.e("s_mov_b32 s53, 1")
    k.e("s_mov_b32 s56, s36")
    k.e("s_mov_b32 s57, s37")
    k.e("s_mov_b32 s58, s38")
    k.e("s_mov_b32 s59, 0x00020000")
    k.e("s_lshl_b32 s54, s40, 8")
    k.e(f"s_add_u32 s54, s54, {MOD_CS3}")
    k.label("L_pre_BC_go")
    k.e("s_mov_b32 s59, 0x00020000")
    k.e("v_mul_lo_u32 v7, v1, s42")
    k.e("v_lshlrev_b32 v8, 4, v2")
    k.e("v_add3_u32 v7, v7, v8, s43")
    k.e("s_lshl_b32 s45, s42, 5")
    k.e("s_mov_b32 s44, 0")
    for i in range(16):
        k.e(f"buffer_load_dwordx4 {v(WA + 4 * i, 4)}, v7, s[56:59], s44 offen")
        k.e("s_add_u32 s44, s44, s45")
    k.e("s_waitcnt vmcnt(16)")
    silu_to_lds(k, LDS_SC, ones_if="s53")
    k.e("s_waitcnt lgkmcnt(0)")
    k.e("s_barrier")
    k.e("v_lshlrev_b32 v19, 2, v1")
    for i in range(16):
        k.e(f"ds_read_b32 {v(SV + i)}, v19 offset:{LDS_SC + i * 128}")
    for j in range(8):
        k.e(f"v_mov_b32 {v(ACC + j)}, 0")
    k.e("s_waitcnt lgkmcnt(0)")
    for i in range(16):
        k.e(f"s_waitcnt vmcnt({15 - i})")
        gemv_step(k, WA + 4 * i, ACC, SV + i)
    k.e("v_lshlrev_b32 v20, 8, v1")
    k.e("v_lshl_add_u32 v20, v2, 5, v20")
    k.e(f"ds_write_b128 v20, {v(ACC, 4)} offset:{LDS_RED}")
    k.e(f"ds_write_b128 v20, {v(ACC + 4, 4)} offset:{LDS_RED + 16}")
    k.e("s_waitcnt lgkmcnt(0)")
    k.e("s_barrier")
    k.e("v_cmp_gt_u32 vcc, 64, v0")
    k.e("s_and_saveexec_b64 s[48:49], vcc")
    k.e("s_cbranch_execz L_pre_end")
    k.e("v_lshlrev_b32 v25, 2, v0")
    for g in range(32):
        k.e(f"ds_read_b32 {v(WA + g)}, v25 offset:{LDS_RED + g * 256}")
    k.e("s_waitcnt lgkmcnt(0)")
    for g in range(1, 32):
        k.e(f"v_add_f32 {v(WA)}, {v(WA)}, {v(WA + g)}")
    k.e("s_cmp_eq_u32 s53, 1")
    k.e("s_cbranch_scc1 L_pre_BC_store")
    round_bf16(k, WA, WA, WA + 1)
    k.e("s_lshr_b32 s55, s40, 3")
    k.e("s_cmp_eq_u32 s55, 2")
    k.e("s_cbranch_scc0 L_pre_BC_store")
    k.e(f"v_add_f32 {v(WA)}, 1.0, {v(WA)}")
    round_bf16(k, WA, WA, WA + 1)
    k.label("L_pre_BC_store")
    k.e("v_add_u32 v25, s54, v25")
    k.e(f"buffer_store_dword {v(WA)}, v25, s[32:35], 0 offen")
    k.label("L_pre_end")
    k.e("s_endpgm")
    return k


def silu_to_lds(k, lds_off, ones_if=None):
    k.e("v_lshlrev_b32 v28, 16, v6")
    k.e("v_and_b32 v29, 0xffff0000, v6")
    k.e(f"v_mul_f32 v30, {f32hex(-LOG2E)}, v28")
    k.e(f"v_mul_f32 v31, {f32hex(-LOG2E)}, v29")
    k.e("v_exp_f32 v30, v30")
    k.e("v_exp_f32 v31, v31")
    k.e("s_nop 0")
    k.e("v_add_f32 v30, 1.0, v30")
    k.e("v_add_f32 v31, 1.0, v31")
    k.e("v_rcp_f32 v30, v30")
    k.e("v_rcp_f32 v31, v31")
    k.e("s_nop 0")
    k.e("v_mul_f32 v28, v28, v30")
    k.e("v_mul_f32 v29, v29, v31")
    k.e("v_cvt_pk_bf16_f32 v30, v28, v29")
    k.e("v_lshlrev_b32 v28, 16, v30")
    k.e("v_and_b32 v29, 0xffff0000, v30")
    if ones_if:
        k.e(f"s_cmp_eq_u32 {ones_if}, 1")
        k.e("s_cbranch_scc0 L_pre_silu_keep")
        k.e("v_mov_b32 v28, 1.0")
        k.e("v_mov_b32 v29, 1.0")
        k.label("L_pre_silu_keep")
    k.e("v_lshlrev_b32 v30, 3, v0")
    k.e(f"ds_write_b64 v30, v[28:29] offset:{lds_off}")


def gemv_step(k, w, acc, sv):
    for d in range(4):
        k.e(f"v_lshlrev_b32 v8, 16, {v(w + d)}")
        k.e(f"v_and_b32 v5, 0xffff0000, {v(w + d)}")
        k.e(f"v_fmac_f32 {v(acc + 2 * d)}, v8, {v(sv)}")
        k.e(f"v_fmac_f32 {v(acc + 2 * d + 1)}, v5, {v(sv)}")


PRE_LDS = 2048 + 16384 + 512 + 2048
```

```python
from asmlib import *
from layout import *
from k_pre import srd, round_bf16

S_W, S_A = 8, 12
S_E0, S_E1, S_E2, S_E3 = 16, 20, 24, 28
S_WAVE, S_WI, S_WJ = 32, 33, 34
S_WSO, S_ASO = 35, 36
S_WOFF = 37
S_M0, S_N0, S_KS = 38, 39, 40
S_T = 41

V_LANE = 1
V_WD = 2
V_AD = 6
V_RA = 10
V_RB = 14
V_X = 16
V_ACC = 32
V_FA = 96
V_FB = 160
SLOT = 32768


def mf(d, A, B, C):
    return f"v_mfma_f32_32x32x16_bf16 {d}, {A}, {B}, {C}"


class Gemm:
    def __init__(self, k, TM, TN, K, KS, RS, KCA, shifted=False):
        self.k, self.TM, self.TN, self.K, self.KS, self.RS, self.KCA = k, TM, TN, K, KS, RS, KCA
        self.shifted = shifted
        self.MQ = TM // 64
        self.NB = TN // 64
        self.kps = KS // 16
        self.nst = K // KS
        self.NS = min(4, self.nst)
        assert KS * TN * 2 == 16384 and (TM // 32) * self.kps * 1024 == 16384

    def setup(self):
        k, e = self.k, self.k.e
        L = V_LANE
        e(f"s_lshl_b32 {s(S_WOFF)}, {s(S_WAVE)}, 12")
        if self.TN == 128:
            e(f"v_lshrrev_b32 v16, 4, {v(L)}")
            e(f"v_and_b32 v17, 15, {v(L)}")
            e("v_lshlrev_b32 v18, 2, v16")
            e("v_xor_b32 v18, v18, v17")
            rows_w, rows_i = 16, 4
        else:
            e(f"v_lshrrev_b32 v16, 3, {v(L)}")
            e(f"v_and_b32 v17, 7, {v(L)}")
            e("v_lshrrev_b32 v18, 1, v16")
            e("v_and_b32 v18, 1, v18")
            e("v_lshlrev_b32 v18, 2, v18")
            e("v_xor_b32 v18, v18, v17")
            rows_w, rows_i = 32, 8
        e("v_lshlrev_b32 v18, 4, v18")
        e(f"s_mov_b32 {s(S_T)}, {self.RS}")
        e(f"v_mul_lo_u32 v19, v16, {s(S_T)}")
        e("v_add_u32 v18, v18, v19")
        e(f"s_mul_i32 {s(S_T)}, {s(S_WAVE)}, {rows_w * self.RS}")
        e(f"v_add_u32 v18, {s(S_T)}, v18")
        for i in range(4):
            e(f"v_add_u32 {v(V_WD + i)}, {i * (rows_i * self.RS - 1024)}, v18")
        if self.TM == 128:
            e(f"s_mul_i32 {s(S_T)}, {s(S_WAVE)}, {self.KCA * 1024}")
        else:
            e(f"s_lshr_b32 {s(S_T)}, {s(S_WAVE)}, 1")
            e(f"s_mul_i32 {s(S_T)}, {s(S_T)}, {self.KCA * 1024}")
            e(f"s_and_b32 {s(S_T + 1)}, {s(S_WAVE)}, 1")
            e(f"s_lshl_b32 {s(S_T + 1)}, {s(S_T + 1)}, 12")
            e(f"s_add_u32 {s(S_T)}, {s(S_T)}, {s(S_T + 1)}")
        if not self.shifted:
            e(f"v_lshlrev_b32 v16, 4, {v(L)}")
            e(f"v_add_u32 {v(V_AD)}, {s(S_T)}, v16")
        else:
            e(f"s_lshr_b32 {s(S_T + 1)}, {s(S_M0)}, 5")
            e(f"s_mul_i32 {s(S_T + 1)}, {s(S_T + 1)}, {self.KCA * 1024}")
            e(f"s_add_u32 {s(S_T)}, {s(S_T)}, {s(S_T + 1)}")
            e(f"v_and_b32 v16, 31, {v(L)}")
            e(f"v_and_b32 v17, 32, {v(L)}")
            for g, sh in enumerate((-1, 1, -2, 2)):
                e(f"v_add_u32 v18, {sh}, v16")
                e("v_ashrrev_i32 v19, 5, v18")
                e("v_and_b32 v18, 31, v18")
                e("v_add_u32 v18, v18, v17")
                e("v_lshlrev_b32 v18, 4, v18")
                e(f"s_mov_b32 {s(S_T + 1)}, {self.KCA * 1024}")
                e(f"v_mul_lo_u32 v19, v19, {s(S_T + 1)}")
                e("v_add_u32 v18, v18, v19")
                e(f"v_add_u32 {v(V_AD + g)}, {s(S_T)}, v18")
        e(f"v_and_b32 v16, 15, {v(L)}")
        e("v_lshrrev_b32 v16, 2, v16")
        e(f"v_and_b32 v17, 3, {v(L)}")
        e(f"v_lshrrev_b32 v18, 4, {v(L)}")
        e("v_and_b32 v18, 1, v18")
        e(f"v_lshrrev_b32 v19, 5, {v(L)}")
        e("v_and_b32 v20, 1, v17")
        e("v_lshl_add_u32 v20, v18, 1, v20")
        e("v_lshlrev_b32 v20, 4, v20")
        e("v_lshrrev_b32 v17, 1, v17")
        e("v_lshl_add_u32 v20, v17, 3, v20")
        rowb = self.TN * 2
        sh = 8 if rowb == 256 else 7
        e(f"v_lshl_add_u32 v20, v16, {sh}, v20")
        e(f"v_lshl_add_u32 v20, v19, {sh + 3}, v20")
        if self.TN == 64:
            e("v_lshrrev_b32 v16, 1, v16")
        for nb in range(self.NB):
            e(f"s_mul_i32 {s(S_T)}, {s(S_WJ)}, {self.NB}")
            e(f"s_add_u32 {s(S_T)}, {s(S_T)}, {nb}")
            e(f"v_xor_b32 v21, {s(S_T)}, v16")
            e(f"v_lshl_add_u32 {v(V_RA + nb)}, v21, 6, v20")
            e(f"v_add_u32 {v(V_RA + 2 + nb)}, 65536, {v(V_RA + nb)}")
        e(f"s_mul_i32 {s(S_T)}, {s(S_WI)}, {self.MQ * self.kps * 1024}")
        e(f"s_add_u32 {s(S_T)}, {s(S_T)}, 16384")
        e(f"v_lshlrev_b32 v16, 4, {v(L)}")
        e(f"v_add_u32 {v(V_RB)}, {s(S_T)}, v16")
        e(f"v_add_u32 {v(V_RB + 1)}, 65536, {v(V_RB)}")

    def dma(self, st):
        slot = (st % self.NS) * SLOT
        items = [f"s_add_u32 m0, {s(S_WOFF)}, {slot}"]
        for i in range(4):
            items.append((f"buffer_load_dwordx4 {v(V_WD + i)}, {s(S_W, 4)}, {s(S_WSO)} offen offset:{i * 1024} lds", f"st{st}"))
        items.append(f"s_add_u32 {s(S_WSO)}, {s(S_WSO)}, {self.KS * self.RS}")
        items.append(f"s_add_u32 m0, {s(S_WOFF)}, {slot + 16384}")
        ad = V_AD + (st if self.shifted else 0)
        for i in range(4):
            items.append((f"buffer_load_dwordx4 {v(ad)}, {s(S_A, 4)}, {s(S_ASO)} offen offset:{i * 1024} lds", f"st{st}"))
        items.append(f"s_add_u32 {s(S_ASO)}, {s(S_ASO)}, {self.kps * 1024}")
        return items

    def fa(self, buf, kl, nb):
        return V_FA + buf * 32 + (kl * self.NB + nb) * 4

    def fb(self, buf, kl, qb):
        return V_FB + buf * 32 + (kl * self.MQ + qb) * 4

    def reads(self, st):
        sl = st % self.NS
        hi = sl >= 2
        base = (sl & 1) * SLOT
        rowb = self.TN * 2
        out = []
        for kl in range(self.kps):
            for qb in range(self.MQ):
                out.append(f"ds_read_b128 {v(self.fb(st & 1, kl, qb), 4)}, {v(V_RB + hi)} offset:{base + (qb * self.kps + kl) * 1024}")
            for nb in range(self.NB):
                for p in range(2):
                    out.append(f"ds_read_b64_tr_b16 {v(self.fa(st & 1, kl, nb) + 2 * p, 2)}, {v(V_RA + 2 * hi + nb)} offset:{base + (16 * kl + 4 * p) * rowb}")
        return out

    def acc(self, nb, qb):
        return V_ACC + (nb * self.MQ + qb) * 16

    def emit_items(self, items):
        for it in items:
            if isinstance(it, tuple):
                self.k.vmem(it[0], it[1])
            else:
                self.k.e(it)

    def prologue_loads(self):
        for st in range(self.NS):
            self.emit_items(self.dma(st))

    def main(self, extra_loads=None):
        k, e = self.k, self.k.e
        e(k.vm_wait(["st0"]))
        e("s_barrier")
        self.emit_items(self.reads(0))
        for st in range(self.nst):
            mfs = []
            for kl in range(self.kps):
                for nb in range(self.NB):
                    for qb in range(self.MQ):
                        d = v(self.acc(nb, qb), 16)
                        first = st == 0 and kl == 0
                        mfs.append(mf(d, v(self.fa(st & 1, kl, nb), 4), v(self.fb(st & 1, kl, qb), 4), "0" if first else d))
            e("s_waitcnt lgkmcnt(0)")
            fill = []
            if st + 1 < self.nst:
                e(k.vm_wait([f"st{st + 1}"]))
                e("s_barrier")
                fill += self.reads(st + 1)
                if st + self.NS < self.nst:
                    d = self.dma(st + self.NS)
                    fill = merge(fill, d)
            if extra_loads and st == max(0, self.nst - 2):
                fill = merge(fill, extra_loads)
            n = len(mfs)
            gaps = [[] for _ in range(n)]
            for i, x in enumerate(fill):
                gaps[min(n - 1, i * max(1, n - 2) // max(1, len(fill)))].append(x)
            for g in range(n):
                e(mfs[g])
                self.emit_items(gaps[g])


def merge(a_, b_):
    out = []
    na, nb = len(a_), len(b_)
    ia = ib = 0
    while ia < na or ib < nb:
        if ib >= nb or (ia < na and ia * nb <= ib * na):
            out.append(a_[ia]); ia += 1
        else:
            out.append(b_[ib]); ib += 1
    return out


def header(k, nwg, loads):
    e = k.e
    e(f"s_cmp_ge_u32 s2, {nwg}")
    e(f"s_cbranch_scc1 L_{k.name}_end")
    for reg, off, n in loads:
        e(f"s_load_dwordx{n} {s(reg, n)}, s[0:1], {off}" if n > 1 else "")
    e(f"v_and_b32 {v(V_LANE)}, 63, v0")
    e("v_lshrrev_b32 v2, 6, v0")
    e("s_nop 0")
    e(f"v_readfirstlane_b32 {s(S_WAVE)}, v2")
    e(f"s_lshr_b32 {s(S_WI)}, {s(S_WAVE)}, 1")
    e(f"s_and_b32 {s(S_WJ)}, {s(S_WAVE)}, 1")


def finish(k, slot):
    k.stamp()
    if Kern.STAMPS:
        k.e("s_waitcnt vmcnt(0)")
    k.stamp()
    k.stamp_flush(slot)
    k.label(f"L_{k.name}_end")
    k.e("s_endpgm")


def out_frag_offset(k, g, dst_v, kc_out, tmp):
    e = k.e
    e(f"s_lshr_b32 {s(tmp)}, {s(S_M0)}, 5")
    e(f"s_mul_i32 {s(tmp + 1)}, {s(S_WI)}, {g.MQ}")
    e(f"s_add_u32 {s(tmp)}, {s(tmp)}, {s(tmp + 1)}")
    e(f"s_mul_i32 {s(tmp)}, {s(tmp)}, {kc_out}")
    e(f"s_lshr_b32 {s(tmp + 1)}, {s(S_N0)}, 4")
    e(f"s_add_u32 {s(tmp)}, {s(tmp)}, {s(tmp + 1)}")
    e(f"s_mul_i32 {s(tmp + 1)}, {s(S_WJ)}, {2 * g.NB}")
    e(f"s_add_u32 {s(tmp)}, {s(tmp)}, {s(tmp + 1)}")
    e(f"s_lshl_b32 {s(tmp)}, {s(tmp)}, 10")
    e(f"v_lshlrev_b32 {v(dst_v)}, 4, {v(V_LANE)}")
    e(f"v_add_u32 {v(dst_v)}, {s(tmp)}, {v(dst_v)}")


def pack8(k, dst, src):
    for m in range(4):
        k.e(f"v_cvt_pk_bf16_f32 {v(dst + m)}, {v(src + 2 * m)}, {v(src + 2 * m + 1)}")


def unpack8(k, dst, src):
    for m in range(4):
        k.e(f"v_lshlrev_b32 {v(dst + 2 * m)}, 16, {v(src + m)}")
        k.e(f"v_and_b32 {v(dst + 2 * m + 1)}, 0xffff0000, {v(src + m)}")


GELU_C1 = -2.0 * LOG2E * math.sqrt(2.0 / math.pi)
GELU_C2 = GELU_C1 * 0.044715


def gelu_block(k, x, n, t, sc1, sc2):
    e = k.e
    for i in range(n):
        e(f"v_mul_f32 {v(t + i)}, {v(x + i)}, {v(x + i)}")
    for i in range(n):
        e(f"v_fma_f32 {v(t + i)}, {v(t + i)}, {s(sc2)}, {v(V_X + 15)}")
    for i in range(n):
        e(f"v_mul_f32 {v(t + i)}, {v(t + i)}, {v(x + i)}")
    for i in range(n):
        e(f"v_exp_f32 {v(t + i)}, {v(t + i)}")
    for i in range(n):
        e(f"v_add_f32 {v(t + i)}, 1.0, {v(t + i)}")
    for i in range(n):
        e(f"v_rcp_f32 {v(t + i)}, {v(t + i)}")
    for i in range(n):
        e(f"v_mul_f32 {v(x + i)}, {v(x + i)}, {v(t + i)}")


def round8(k, x, t):
    pack8(k, t, x)
    unpack8(k, x, t)


def gen_t1():
    k = Kern("oproj_kernel", vgpr=224, agpr=0, sgpr=64)
    e = k.e
    header(k, 256, [(44, 32, 2), (46, 112, 2)])
    k.stamp()
    e("s_and_b32 s48, s2, 7")
    e("s_lshr_b32 s49, s2, 3")
    e(f"s_and_b32 {s(S_KS)}, s48, 3")
    e("s_lshr_b32 s48, s48, 2")
    e("s_lshl_b32 s48, s48, 3")
    e("s_lshr_b32 s50, s49, 2")
    e("s_add_u32 s48, s48, s50")
    e(f"s_lshl_b32 {s(S_M0)}, s48, 7")
    e("s_and_b32 s49, s49, 3")
    e(f"s_lshl_b32 {s(S_N0)}, s49, 7")
    e("s_waitcnt lgkmcnt(0)")
    srd(k, S_W, 44, 0, 4096 * 1024)
    srd(k, S_A, 46, OFF_O, SZ_O)
    e(f"s_lshl_b32 s48, {s(S_KS)}, 21")
    srd(k, S_E0, 46, OFF_PART, SZ_ACT, add_sgpr=48)
    g = Gemm(k, 128, 128, 1024, 64, 1024, 256)
    g.setup()
    e(f"s_lshl_b32 {s(S_WSO)}, {s(S_KS)}, 20")
    e(f"s_lshl_b32 s48, {s(S_N0)}, 1")
    e(f"s_add_u32 {s(S_WSO)}, {s(S_WSO)}, s48")
    e(f"s_lshl_b32 {s(S_ASO)}, {s(S_M0)}, 13")
    e(f"s_lshl_b32 s48, {s(S_KS)}, 16")
    e(f"s_add_u32 {s(S_ASO)}, {s(S_ASO)}, s48")
    g.prologue_loads()
    out_frag_offset(k, g, V_X, 32, 48)
    k.stamp()
    g.main()
    k.stamp()
    e("s_nop 11")
    for qb in range(2):
        for nb in range(2):
            for kap in range(2):
                t = V_FA + ((qb * 4 + nb * 2 + kap) % 8) * 4
                pack8(k, t, g.acc(nb, qb) + 8 * kap)
                e(f"s_mov_b32 s48, {qb * 32768}")
                e(f"buffer_store_dwordx4 {v(t, 4)}, {v(V_X)}, {s(S_E0, 4)}, s48 offen offset:{(nb * 2 + kap) * 1024}")
    finish(k, 2)
    return k


def gen_row():
    k = Kern("row_kernel", vgpr=128, agpr=0, sgpr=64)
    e = k.e
    e("s_cmp_ge_u32 s2, 256")
    e("s_cbranch_scc1 L_row_kernel_end")
    k.stamp()
    e("s_load_dwordx2 s[44:45], s[0:1], 0")
    e("s_load_dwordx2 s[46:47], s[0:1], 112")
    e("v_and_b32 v1, 7, v0")
    e("v_lshrrev_b32 v2, 3, v0")
    e("s_waitcnt lgkmcnt(0)")
    srd(k, 8, 44, 0, SZ_ACT)
    srd(k, 12, 46, OFF_PART, 4 * SZ_ACT)
    srd(k, 16, 46, OFF_MOD, 16384)
    srd(k, 20, 46, OFF_X2, SZ_ACT)
    srd(k, 24, 46, OFF_H, SZ_ACT)
    srd(k, 28, 46, OFF_HN, SZ_ACT)
    e("s_lshr_b32 s48, s2, 2")
    e("s_lshl_b32 s48, s48, 15")
    e("s_and_b32 s49, s2, 3")
    e("s_lshl_b32 s49, s49, 7")
    e("s_add_u32 s48, s48, s49")
    e("v_lshlrev_b32 v3, 9, v2")
    e("v_lshl_add_u32 v3, v1, 4, v3")
    e("v_add_u32 v3, s48, v3")
    e("v_add_u32 v4, 16384, v3")
    e("s_lshl_b32 s48, s2, 13")
    e("v_lshlrev_b32 v5, 10, v1")
    e("v_lshl_add_u32 v5, v2, 4, v5")
    e("v_add_u32 v5, s48, v5")
    e("v_lshlrev_b32 v6, 5, v2")
    PART, XR, PAR = 16, 48, 56
    for pc in range(2):
        for ks in range(4):
            e(f"s_mov_b32 s48, {ks * SZ_ACT}")
            e(f"buffer_load_dwordx4 {v(PART + (pc * 4 + ks) * 4, 4)}, {v(3 + pc)}, s[12:15], s48 offen")
        e(f"buffer_load_dwordx4 {v(XR + 4 * pc, 4)}, v5, s[8:11], 0 offen offset:{512 * pc}")
    for pc in range(2):
        for pi, off in enumerate((MOD_GA, MOD_C1B, MOD_SB)):
            for hh in range(2):
                e(f"s_mov_b32 s48, {off + 1024 * pc}")
                e(f"buffer_load_dwordx4 {v(PAR + (pc * 3 + pi) * 8 + 4 * hh, 4)}, v6, s[16:19], s48 offen offset:{16 * hh}")
    X2 = 104
    T = 8
    e("s_waitcnt vmcnt(12)")
    for pc in range(2):
        acc = X2 + 8 * pc
        unpack8(k, acc, PART + (pc * 4) * 4)
        for ks in range(1, 4):
            unpack8(k, T, PART + (pc * 4 + ks) * 4)
            for q in range(8):
                e(f"v_add_f32 {v(acc + q)}, {v(acc + q)}, {v(T + q)}")
        round8(k, acc, T)
    e("s_waitcnt vmcnt(0)")
    for pc in range(2):
        acc = X2 + 8 * pc
        ga = PAR + (pc * 3) * 8
        for q in range(8):
            e(f"v_mul_f32 {v(acc + q)}, {v(ga + q)}, {v(acc + q)}")
        round8(k, acc, T)
        unpack8(k, T, XR + 4 * pc)
        for q in range(8):
            e(f"v_add_f32 {v(acc + q)}, {v(acc + q)}, {v(T + q)}")
        pack8(k, PART + 4 * pc, acc)
        unpack8(k, acc, PART + 4 * pc)
        e(f"buffer_store_dwordx4 {v(PART + 4 * pc, 4)}, {v(3 + pc)}, s[20:23], 0 offen")

    def row_stats(lds_off, mean, rstd):
        e(f"v_mov_b32 {v(mean)}, 0")
        e(f"v_mov_b32 {v(rstd)}, 0")
        for q in range(16):
            e(f"v_add_f32 {v(mean)}, {v(mean)}, {v(X2 + q)}")
            e(f"v_fmac_f32 {v(rstd)}, {v(X2 + q)}, {v(X2 + q)}")
        e("v_lshlrev_b32 v8, 8, v1")
        e("v_lshl_add_u32 v8, v2, 3, v8")
        e(f"ds_write_b64 v8, {v(mean, 2)} offset:{lds_off}")
        e("s_waitcnt lgkmcnt(0)")
        e("s_barrier")
        e("v_and_b32 v9, 7, v2")
        e("v_lshlrev_b32 v9, 5, v9")
        e("v_lshl_add_u32 v9, v1, 8, v9")
        e(f"ds_read_b128 v[8:11], v9 offset:{lds_off}")
        e(f"v_and_b32 v12, 7, v2")
        e("v_lshlrev_b32 v12, 5, v12")
        e("v_lshl_add_u32 v12, v1, 8, v12")
        e(f"ds_read_b128 v[12:15], v12 offset:{lds_off + 16}")
        e("s_waitcnt lgkmcnt(0)")
        e("v_add_f32 v8, v8, v10")
        e("v_add_f32 v9, v9, v11")
        e("v_add_f32 v12, v12, v14")
        e("v_add_f32 v13, v13, v15")
        e(f"v_add_f32 {v(mean)}, v8, v12")
        e(f"v_add_f32 {v(rstd)}, v9, v13")
        for off in (0x201F, 0x401F):
            e(f"ds_swizzle_b32 v8, {v(mean)} offset:{off}")
            e(f"ds_swizzle_b32 v9, {v(rstd)} offset:{off}")
            e("s_waitcnt lgkmcnt(0)")
            e(f"v_add_f32 {v(mean)}, {v(mean)}, v8")
            e(f"v_add_f32 {v(rstd)}, {v(rstd)}, v9")
        e(f"v_mov_b32 v8, {v(mean)}")
        e(f"v_mov_b32 v9, {v(rstd)}")
        e("s_nop 1")
        e(f"v_permlane32_swap_b32 {v(mean)}, v8")
        e(f"v_permlane32_swap_b32 {v(rstd)}, v9")
        e("s_nop 1")
        e(f"v_add_f32 {v(mean)}, {v(mean)}, v8")
        e(f"v_add_f32 {v(rstd)}, {v(rstd)}, v9")
        e(f"v_mul_f32 {v(mean)}, {1.0 / 512!r}, {v(mean)}")
        e(f"v_mul_f32 {v(rstd)}, {1.0 / 512!r}, {v(rstd)}")
        e(f"v_fma_f32 {v(rstd)}, -{v(mean)}, {v(mean)}, {v(rstd)}")
        e(f"v_max_f32 {v(rstd)}, 0, {v(rstd)}")
        e(f"v_add_f32 {v(rstd)}, 0x3727c5ac, {v(rstd)}")
        e(f"v_rsq_f32 {v(rstd)}, {v(rstd)}")
        e("s_nop 0")
        e(f"v_mul_f32 {v(mean)}, {v(mean)}, {v(rstd)}")

    row_stats(0, 120, 121)
    for pc in range(2):
        acc = X2 + 8 * pc
        c1, sb = PAR + (pc * 3 + 1) * 8, PAR + (pc * 3 + 2) * 8
        for q in range(8):
            e(f"v_fma_f32 {v(acc + q)}, {v(acc + q)}, v121, -v120")
        round8(k, acc, T)
        for q in range(8):
            e(f"v_mul_f32 {v(acc + q)}, {v(acc + q)}, {v(c1 + q)}")
        round8(k, acc, T)
        for q in range(8):
            e(f"v_add_f32 {v(acc + q)}, {v(acc + q)}, {v(sb + q)}")
        pack8(k, PART + 8 + 4 * pc, acc)
        unpack8(k, acc, PART + 8 + 4 * pc)
        e(f"buffer_store_dwordx4 {v(PART + 8 + 4 * pc, 4)}, {v(3 + pc)}, s[24:27], 0 offen")
    row_stats(2048, 122, 123)
    for pc in range(2):
        acc = X2 + 8 * pc
        for q in range(8):
            e(f"v_fma_f32 {v(acc + q)}, {v(acc + q)}, v123, -v122")
        pack8(k, PART + 16 + 4 * pc, acc)
        e(f"buffer_store_dwordx4 {v(PART + 16 + 4 * pc, 4)}, {v(3 + pc)}, s[28:31], 0 offen")
    finish(k, 3)
    return k


def tile64_map(k):
    e = k.e
    e("s_and_b32 s48, s2, 7")
    e("s_lshr_b32 s49, s2, 3")
    e("s_lshl_b32 s48, s48, 2")
    e("s_lshr_b32 s50, s49, 3")
    e("s_add_u32 s48, s48, s50")
    e(f"s_lshl_b32 {s(S_M0)}, s48, 6")
    e("s_and_b32 s49, s49, 7")
    e(f"s_lshl_b32 {s(S_N0)}, s49, 6")


def gen_t2():
    k = Kern("mix1_kernel", vgpr=224, agpr=0, sgpr=64)
    e = k.e
    header(k, 256, [(44, 48, 2), (46, 112, 2)])
    k.stamp()
    tile64_map(k)
    e("s_waitcnt lgkmcnt(0)")
    srd(k, S_W, 44, 0, 512 * 1024)
    srd(k, S_A, 46, OFF_HN, SZ_ACT)
    srd(k, S_E0, 46, OFF_H1, SZ_ACT)
    g = Gemm(k, 64, 64, 512, 128, 1024, 32)
    g.setup()
    e(f"s_lshl_b32 {s(S_WSO)}, {s(S_N0)}, 1")
    e(f"s_lshl_b32 {s(S_ASO)}, {s(S_M0)}, 10")
    g.prologue_loads()
    out_frag_offset(k, g, V_X, 32, 48)
    e(f"s_mov_b32 s50, {f32hex(GELU_C2)}")
    e(f"v_mov_b32 {v(V_X + 15)}, {f32hex(GELU_C1)}")
    k.stamp()
    g.main()
    k.stamp()
    e("s_nop 11")
    acc = g.acc(0, 0)
    for kap in range(2):
        round8(k, acc + 8 * kap, V_FA)
    gelu_block(k, acc, 16, V_FB, None, 50)
    for kap in range(2):
        pack8(k, V_FA + 4 * kap, acc + 8 * kap)
        e(f"buffer_store_dwordx4 {v(V_FA + 4 * kap, 4)}, {v(V_X)}, {s(S_E0, 4)}, 0 offen offset:{kap * 1024}")
    finish(k, 4)
    return k


def gen_t3():
    k = Kern("mix2_kernel", vgpr=224, agpr=0, sgpr=64)
    e = k.e
    header(k, 256, [(44, 56, 2), (46, 112, 2)])
    k.stamp()
    tile64_map(k)
    e("s_waitcnt lgkmcnt(0)")
    srd(k, S_W, 44, 0, 512 * 1024)
    srd(k, S_A, 46, OFF_H1, SZ_ACT)
    srd(k, S_E0, 46, OFF_X1, SZ_ACT)
    srd(k, S_E1, 46, OFF_H, SZ_ACT)
    srd(k, S_E2, 46, OFF_ST, SZ_ST)
    g = Gemm(k, 64, 64, 512, 128, 1024, 32, shifted=True)
    g.setup()
    e(f"s_lshl_b32 {s(S_WSO)}, {s(S_N0)}, 1")
    e(f"s_mov_b32 {s(S_ASO)}, 0")
    g.prologue_loads()
    out_frag_offset(k, g, V_X, 32, 48)
    HR = V_X + 4
    for kap in range(2):
        k.vmem(f"buffer_load_dwordx4 {v(HR + 4 * kap, 4)}, {v(V_X)}, {s(S_E1, 4)}, 0 offen offset:{kap * 1024}", "hres")
    e(f"v_and_b32 {v(V_X + 1)}, 31, {v(V_LANE)}")
    e(f"s_lshl_b32 s48, {s(S_WI)}, 5")
    e(f"s_add_u32 s48, s48, {s(S_M0)}")
    e(f"v_add_u32 {v(V_X + 1)}, s48, {v(V_X + 1)}")
    e(f"v_lshlrev_b32 {v(V_X + 1)}, 7, {v(V_X + 1)}")
    e(f"s_lshr_b32 s48, {s(S_N0)}, 5")
    e(f"s_add_u32 s48, s48, {s(S_WJ)}")
    e("s_lshl_b32 s48, s48, 3")
    e(f"v_add_u32 {v(V_X + 1)}, s48, {v(V_X + 1)}")
    k.stamp()
    g.main()
    k.stamp()
    e("s_nop 11")
    e(k.vm_wait(["hres"]))
    acc = g.acc(0, 0)
    T = V_FB
    for kap in range(2):
        round8(k, acc + 8 * kap, V_FA)
        unpack8(k, T, HR + 4 * kap)
        for q in range(8):
            e(f"v_add_f32 {v(acc + 8 * kap + q)}, {v(acc + 8 * kap + q)}, {v(T + q)}")
        pack8(k, V_FA + 8 + 4 * kap, acc + 8 * kap)
        unpack8(k, acc + 8 * kap, V_FA + 8 + 4 * kap)
        e(f"buffer_store_dwordx4 {v(V_FA + 8 + 4 * kap, 4)}, {v(V_X)}, {s(S_E0, 4)}, 0 offen offset:{kap * 1024}")
    e(f"v_mov_b32 {v(T)}, 0")
    e(f"v_mov_b32 {v(T + 1)}, 0")
    for q in range(16):
        e(f"v_add_f32 {v(T)}, {v(T)}, {v(acc + q)}")
        e(f"v_fmac_f32 {v(T + 1)}, {v(acc + q)}, {v(acc + q)}")
    e(f"v_mov_b32 {v(T + 2)}, {v(T)}")
    e(f"v_mov_b32 {v(T + 3)}, {v(T + 1)}")
    e("s_nop 1")
    e(f"v_permlane32_swap_b32 {v(T)}, {v(T + 2)}")
    e(f"v_permlane32_swap_b32 {v(T + 1)}, {v(T + 3)}")
    e("s_nop 1")
    e(f"v_add_f32 {v(T)}, {v(T)}, {v(T + 2)}")
    e(f"v_add_f32 {v(T + 1)}, {v(T + 1)}, {v(T + 3)}")
    e(f"v_cmp_gt_u32 vcc, 32, {v(V_LANE)}")
    e("s_and_saveexec_b64 s[50:51], vcc")
    e(f"buffer_store_dwordx2 {v(T, 2)}, {v(V_X + 1)}, {s(S_E2, 4)}, 0 offen")
    e("s_mov_b64 exec, s[50:51]")
    finish(k, 5)
    return k


def gen_t4a():
    k = Kern("mlp1_kernel", vgpr=224, agpr=0, sgpr=64)
    e = k.e
    header(k, 224, [(44, 64, 2), (46, 112, 2)])
    k.stamp()
    e("s_and_b32 s48, s2, 7")
    e("s_lshr_b32 s49, s2, 3")
    e("s_cmp_ge_u32 s49, 14")
    e("s_cselect_b32 s50, 1, 0")
    e("s_cselect_b32 s51, 14, 0")
    e("s_sub_u32 s49, s49, s51")
    e("s_lshl_b32 s48, s48, 1")
    e("s_add_u32 s48, s48, s50")
    e(f"s_lshl_b32 {s(S_M0)}, s48, 7")
    e(f"s_lshl_b32 {s(S_N0)}, s49, 7")
    e("s_waitcnt lgkmcnt(0)")
    srd(k, S_W, 44, 0, 512 * 3584)
    srd(k, S_A, 46, OFF_X1, SZ_ACT)
    srd(k, S_E0, 46, OFF_H3, SZ_H3)
    srd(k, S_E1, 46, OFF_ST, SZ_ST)
    srd(k, S_E2, 46, OFF_MOD + MOD_CS3, 1792 * 4)
    g = Gemm(k, 128, 128, 512, 64, 3584, 32)
    g.setup()
    e(f"s_lshl_b32 {s(S_WSO)}, {s(S_N0)}, 1")
    e(f"s_lshl_b32 {s(S_ASO)}, {s(S_M0)}, 10")
    g.prologue_loads()
    out_frag_offset(k, g, V_X, 112, 48)
    e(f"s_mov_b32 s50, {f32hex(GELU_C2)}")
    e(f"v_mov_b32 {v(V_X + 15)}, {f32hex(GELU_C1)}")
    e(f"v_and_b32 {v(V_X + 1)}, 31, {v(V_LANE)}")
    e(f"s_lshl_b32 s48, {s(S_WI)}, 6")
    e(f"s_add_u32 s48, s48, {s(S_M0)}")
    e(f"v_add_u32 {v(V_X + 1)}, s48, {v(V_X + 1)}")
    e(f"v_lshlrev_b32 {v(V_X + 1)}, 7, {v(V_X + 1)}")
    e(f"v_lshrrev_b32 {v(V_X + 2)}, 5, {v(V_LANE)}")
    e(f"v_lshlrev_b32 {v(V_X + 2)}, 5, {v(V_X + 2)}")
    e(f"s_lshl_b32 s48, {s(S_WJ)}, 6")
    e(f"s_add_u32 s48, s48, {s(S_N0)}")
    e("s_lshl_b32 s48, s48, 2")
    e(f"v_add_u32 {v(V_X + 2)}, s48, {v(V_X + 2)}")
    k.stamp()
    g.main()
    k.stamp()
    ST = V_FA
    CS = V_FB
    for nb in range(2):
        for kap in range(2):
            for hh in range(2):
                k.vmem(f"buffer_load_dwordx4 {v(CS + (nb * 2 + kap) * 8 + 4 * hh, 4)}, {v(V_X + 2)}, {s(S_E2, 4)}, 0 offen offset:{(nb * 32 + kap * 16) * 4 + 16 * hh}", "cs")
    MEAN, RSTD = V_X + 4, V_X + 6
    for qb in range(2):
        for q in range(8):
            e(f"s_mov_b32 s48, {qb * 32 * 128}")
            k.vmem(f"buffer_load_dwordx4 {v(ST + 4 * q, 4)}, {v(V_X + 1)}, {s(S_E1, 4)}, s48 offen offset:{16 * q}", f"st_{qb}")
        e(k.vm_wait([f"st_{qb}"]))
        for q in range(1, 16):
            e(f"v_add_f32 {v(ST)}, {v(ST)}, {v(ST + 2 * q)}")
            e(f"v_add_f32 {v(ST + 1)}, {v(ST + 1)}, {v(ST + 2 * q + 1)}")
        e(f"v_mul_f32 {v(MEAN + qb)}, {1.0 / 512!r}, {v(ST)}")
        e(f"v_mul_f32 {v(RSTD + qb)}, {1.0 / 512!r}, {v(ST + 1)}")
        e(f"v_fma_f32 {v(RSTD + qb)}, -{v(MEAN + qb)}, {v(MEAN + qb)}, {v(RSTD + qb)}")
        e(f"v_max_f32 {v(RSTD + qb)}, 0, {v(RSTD + qb)}")
        e(f"v_add_f32 {v(RSTD + qb)}, 0x3727c5ac, {v(RSTD + qb)}")
        e(f"v_rsq_f32 {v(RSTD + qb)}, {v(RSTD + qb)}")
        e("s_nop 1")
    TMP = V_FA + 32
    PK = V_FA + 48
    for qb in range(2):
        for nb in range(2):
            acc = g.acc(nb, qb)
            for q in range(16):
                e(f"v_fma_f32 {v(acc + q)}, -{v(MEAN + qb)}, {v(CS + nb * 16 + q)}, {v(acc + q)}")
            for q in range(16):
                e(f"v_mul_f32 {v(acc + q)}, {v(acc + q)}, {v(RSTD + qb)}")
            for kap in range(2):
                round8(k, acc + 8 * kap, PK)
            gelu_block(k, acc, 16, TMP, None, 50)
            for kap in range(2):
                t = PK + 4 + ((nb * 2 + kap) % 2) * 4
                pack8(k, t, acc + 8 * kap)
                e(f"s_mov_b32 s48, {qb * 112 * 1024}")
                e(f"buffer_store_dwordx4 {v(t, 4)}, {v(V_X)}, {s(S_E0, 4)}, s48 offen offset:{(nb * 2 + kap) * 1024}")
    finish(k, 6)
    return k


def gen_t4b():
    k = Kern("mlp2_kernel", vgpr=224, agpr=0, sgpr=64)
    e = k.e
    header(k, 256, [(44, 72, 2), (46, 112, 2), (52, 96, 2)])
    k.stamp()
    tile64_map(k)
    e("s_waitcnt lgkmcnt(0)")
    srd(k, S_W, 44, 0, 1792 * 1024)
    srd(k, S_A, 46, OFF_H3, SZ_H3)
    srd(k, S_E0, 52, 0, SZ_ACT)
    srd(k, S_E1, 46, OFF_X1, SZ_ACT)
    srd(k, S_E2, 46, OFF_X2, SZ_ACT)
    srd(k, S_E3, 46, OFF_MOD + MOD_GB, 2048)
    g = Gemm(k, 64, 64, 1792, 128, 1024, 112)
    g.setup()
    e(f"s_lshl_b32 {s(S_WSO)}, {s(S_N0)}, 1")
    e(f"s_lshr_b32 s48, {s(S_M0)}, 5")
    e(f"s_mul_i32 {s(S_ASO)}, s48, {112 * 1024}")
    g.prologue_loads()
    out_frag_offset(k, g, V_X, 32, 48)
    e(f"v_and_b32 {v(V_X + 1)}, 31, {v(V_LANE)}")
    e(f"s_lshl_b32 s48, {s(S_WI)}, 5")
    e(f"s_add_u32 s48, s48, {s(S_M0)}")
    e(f"v_add_u32 {v(V_X + 1)}, s48, {v(V_X + 1)}")
    e(f"v_lshlrev_b32 {v(V_X + 1)}, 10, {v(V_X + 1)}")
    e(f"v_lshrrev_b32 {v(V_X + 2)}, 5, {v(V_LANE)}")
    e(f"v_lshlrev_b32 {v(V_X + 2)}, 3, {v(V_X + 2)}")
    e(f"s_lshl_b32 s48, {s(S_WJ)}, 5")
    e(f"s_add_u32 s48, s48, {s(S_N0)}")
    e(f"v_add_u32 {v(V_X + 2)}, s48, {v(V_X + 2)}")
    e(f"v_lshl_add_u32 {v(V_X + 1)}, {v(V_X + 2)}, 1, {v(V_X + 1)}")
    e(f"v_lshlrev_b32 {v(V_X + 2)}, 2, {v(V_X + 2)}")
    X1R, X2R, GB = V_ACC + 16, V_ACC + 24, V_ACC + 32
    extra = []
    for kap in range(2):
        extra.append((f"buffer_load_dwordx4 {v(X1R + 4 * kap, 4)}, {v(V_X)}, {s(S_E1, 4)}, 0 offen offset:{kap * 1024}", "ep"))
        extra.append((f"buffer_load_dwordx4 {v(X2R + 4 * kap, 4)}, {v(V_X)}, {s(S_E2, 4)}, 0 offen offset:{kap * 1024}", "ep"))
        for hh in range(2):
            extra.append((f"buffer_load_dwordx4 {v(GB + 8 * kap + 4 * hh, 4)}, {v(V_X + 2)}, {s(S_E3, 4)}, 0 offen offset:{kap * 64 + 16 * hh}", "ep"))
    k.stamp()
    g.main(extra_loads=extra)
    k.stamp()
    e("s_nop 11")
    e(k.vm_wait(["ep"]))
    acc = g.acc(0, 0)
    T = V_FB
    for kap in range(2):
        x = acc + 8 * kap
        round8(k, x, V_FA)
        unpack8(k, T, X1R + 4 * kap)
        for q in range(8):
            e(f"v_add_f32 {v(x + q)}, {v(x + q)}, {v(T + q)}")
        round8(k, x, V_FA)
        for q in range(8):
            e(f"v_mul_f32 {v(x + q)}, {v(x + q)}, {v(GB + 8 * kap + q)}")
        round8(k, x, V_FA)
        unpack8(k, T, X2R + 4 * kap)
        for q in range(8):
            e(f"v_add_f32 {v(x + q)}, {v(x + q)}, {v(T + q)}")
        pack8(k, V_FA + 8 + 4 * kap, x)
        e(f"buffer_store_dwordx4 {v(V_FA + 8 + 4 * kap, 4)}, {v(V_X + 1)}, {s(S_E0, 4)}, 0 offen offset:{kap * 32}")
    finish(k, 7)
    return k


def kernels():
    return [
        (gen_t1(), 256, 256, 131072),
        (gen_row(), 256, 256, 4096),
        (gen_t2(), 256, 256, 131072),
        (gen_t3(), 256, 256, 131072),
        (gen_t4a(), 224, 256, 131072),
        (gen_t4b(), 256, 256, 131072),
    ]
```

```python
import struct
import math

MB = 1 << 20
SZ_ACT = 2048 * 512 * 2

OFF_MOD = 0
MOD_GA, MOD_SB, MOD_C1B, MOD_GB, MOD_CS3 = 0, 2048, 4096, 6144, 8192
OFF_H0 = 1 * MB
OFF_O = 4 * MB
SZ_O = 2048 * 4096 * 2
OFF_PART = 20 * MB
OFF_X2 = 36 * MB
OFF_H = 38 * MB
OFF_HN = 40 * MB
OFF_H1 = 42 * MB
OFF_X1 = 44 * MB
OFF_ST = 46 * MB
SZ_ST = 2048 * 16 * 2 * 4
OFF_H3 = 48 * MB
SZ_H3 = 2048 * 1792 * 2

LOG2E = math.log2(math.e)
ATTN_SCALE = LOG2E / math.sqrt(128.0)

PRE_WGS = 256 + 32 + 28


def f32hex(x):
    return "0x%08x" % struct.unpack("<I", struct.pack("<f", x))[0]
```

```python
import sys
from asmlib import check
from layout import *
import k_pre, k_attn

NAME = "adaLN_cond__mha_block_cached__mixer_s_mlp__prompt"
HEADER = open("cdna_kernels/" + NAME + ".s.ref").read().split("; Override launch geometry")[0]


def build(kernels, out_path, do_check=True):
    txt = [HEADER.rstrip("\n")]
    for k, grid, block, lds in kernels:
        txt.append(f"; @launch kernel={k.name} grid=({grid},1,1) block=({block},1,1) lds={lds}")
    txt.append('.amdgcn_target "amdgcn-amd-amdhsa--gfx950"')
    bodies, descs, seen = [], [], set()
    bad = 0
    for k, *_ in kernels:
        if k.name in seen:
            continue
        seen.add(k.name)
        b, d = k.text()
        bodies.append(b)
        descs.append(d)
        if do_check:
            for take in getattr(k, "takes", [None]):
                errs = check(k, take=take)
                for x in errs[:40]:
                    print("  ", x)
                bad += len(errs)
    txt += bodies + descs
    open(out_path, "w").write("\n".join(txt) + "\n")
    return bad


def all_kernels():
    pre = k_pre.gen_pre()
    pre.takes = [None, {"L_pre_role2"}, {"L_pre_role3"}]
    at = k_attn.gen_attn()
    at.takes = [None, {"L_at_redo"}]
    ks = [(pre, k_pre.PRE_GRID, k_pre.PRE_THREADS, k_pre.PRE_LDS), (at, 256, 256, k_attn.ATTN_LDS)]
    try:
        import k_tail
        ks += k_tail.kernels()
    except ImportError:
        pass
    return ks


if __name__ == "__main__":
    import asmlib
    if "--stamps" in sys.argv:
        sys.argv.remove("--stamps")
        asmlib.Kern.STAMPS = True
    out = sys.argv[1] if len(sys.argv) > 1 else "full.s"
    bad = build(all_kernels(), out)
    print("problems:", bad)
```

```python
import re


def v(n, c=1):
    return f"v{n}" if c == 1 else f"v[{n}:{n + c - 1}]"


def a(n, c=1):
    return f"a{n}" if c == 1 else f"a[{n}:{n + c - 1}]"


def s(n, c=1):
    return f"s{n}" if c == 1 else f"s[{n}:{n + c - 1}]"


class Kern:
    def __init__(self, name, vgpr, agpr, sgpr=96):
        self.name = name
        self.lines = []
        self.vgpr = vgpr
        self.agpr = agpr
        self.sgpr = sgpr
        self.vm = []

    def e(self, text):
        if text is None:
            return
        for ln in text.split("\n"):
            ln = ln.strip()
            if ln:
                if ln.endswith(" lds") and self.lines and re.match(r"s_\w+ m0,", self.lines[-1]):
                    self.lines.append("s_nop 0")
                self.lines.append(ln)

    def label(self, name):
        self.lines.append(name + ":")

    def c(self, text):
        self.lines.append("; " + text)

    STAMPS = False
    OFF_DBG = 200 << 20

    def stamp(self):
        if not Kern.STAMPS:
            return
        i = getattr(self, "nst", 0)
        self.nst = i + 1
        assert i < 6 or True
        assert 75 + 4 * i < 96 or i < 7
        self.e(f"s_memtime s[{72 + 4 * i}:{73 + 4 * i}]")
        self.e(f"s_memrealtime s[{74 + 4 * i}:{75 + 4 * i}]")
        self.e("s_waitcnt lgkmcnt(0)")

    def stamp_flush(self, slot, wsptr_kernarg=112):
        if not Kern.STAMPS:
            return
        n = getattr(self, "nst", 0)
        self.sgpr = max(self.sgpr, 102)
        lab = f"L_stamp_{self.name}_{len(self.lines)}"
        self.e("s_mov_b64 exec, -1")
        self.e("s_load_dwordx2 s[4:5], s[0:1], 112")
        self.e("s_waitcnt lgkmcnt(0) vmcnt(0)")
        self.e(f"s_add_u32 s4, s4, {Kern.OFF_DBG + slot * (1 << 17)}")
        self.e("s_addc_u32 s5, s5, 0")
        self.e("s_mov_b32 s6, 131072")
        self.e("s_mov_b32 s7, 0x00020000")
        self.e("v_cmp_eq_u32 vcc, 0, v0")
        self.e("s_and_saveexec_b64 s[62:63], vcc")
        self.e(f"s_cbranch_execz {lab}")
        self.e("s_lshl_b32 s61, s2, 7")
        self.e("v_mov_b32 v2, s61")
        for i in range(n):
            self.e(f"v_mov_b32 v4, s{72 + 4 * i}")
            self.e(f"v_mov_b32 v5, s{74 + 4 * i}")
            self.e(f"buffer_store_dwordx2 v[4:5], v2, s[4:7], 0 offen offset:{8 * i}")
            self.e("s_waitcnt vmcnt(0)")
        self.label(lab)
        self.e("s_mov_b64 exec, s[62:63]")

    def vmem(self, text, tag):
        self.e(text)
        self.vm.append(tag)

    def vm_count_for(self, tags):
        if isinstance(tags, str):
            tags = [tags]
        last = -1
        for i, t in enumerate(self.vm):
            if t in tags:
                last = i
        if last < 0:
            return None
        return len(self.vm) - 1 - last

    def vm_wait(self, tags):
        n = self.vm_count_for(tags)
        if n is None:
            return None
        assert n <= 63, n
        self.vm = self.vm[len(self.vm) - n:] if n else []
        return f"s_waitcnt vmcnt({n})"

    def text(self):
        acc_off = (self.vgpr + 3) // 4 * 4
        out = [".text", f".globl {self.name}", ".p2align 8", f".type {self.name},@function", f"{self.name}:"]
        for ln in self.lines:
            out.append(ln if ln.endswith(":") else "    " + ln)
        desc = [
            '.section .rodata,"a"', ".p2align 6", f".amdhsa_kernel {self.name}",
            f"  .amdhsa_next_free_vgpr {acc_off + self.agpr if self.agpr else self.vgpr}",
            f"  .amdhsa_next_free_sgpr {self.sgpr}",
            f"  .amdhsa_accum_offset {acc_off}",
            "  .amdhsa_group_segment_fixed_size 0",
            "  .amdhsa_kernarg_size 120",
            "  .amdhsa_user_sgpr_count 2",
            "  .amdhsa_user_sgpr_kernarg_segment_ptr 1",
            "  .amdhsa_system_sgpr_workgroup_id_x 1",
            "  .amdhsa_float_denorm_mode_32 3",
            ".end_amdhsa_kernel",
        ]
        return "\n".join(out), "\n".join(desc)


def weight(ins):
    op = ins.split()[0]
    if op in ("v_exp_f32", "v_rcp_f32", "v_rsq_f32", "v_log_f32", "v_sqrt_f32"):
        return 2.0
    return 1.0


def interleave(mfmas, pre=None, post=None, flow=None, flow_lo=0, flow_hi=None):
    n = len(mfmas)
    pre = pre or {}
    post = {g: list(x) for g, x in (post or {}).items()}
    flow = flow or []
    flow_hi = n if flow_hi is None else flow_hi
    base = [sum(weight(x) for x in post.get(g, [])) + sum(weight(x) for x in pre.get(g + 1, []))
            for g in range(n)]
    span = range(flow_lo, flow_hi)
    tot = sum(weight(x) for x in flow) + sum(base[g] for g in span)
    tgt = tot / max(1, len(span))
    gi = flow_lo
    cum = 0.0
    basecum = base[gi] if n else 0
    placed = {g: [] for g in range(n)}
    for x in flow:
        while gi < flow_hi - 1 and cum + basecum >= tgt * (gi - flow_lo + 1):
            gi += 1
            basecum += base[gi]
        placed[gi].append(x)
        cum += weight(x)
    out = []
    for g in range(n):
        out += pre.get(g, [])
        out.append(mfmas[g])
        p = post.get(g, [])
        f = placed[g]
        out += p + f
    out += pre.get(n, [])
    return out


_REG = re.compile(r"\b([vas])(\d+)\b|\b([vas])\[(\d+):(\d+)\]")
TRANS = ("v_exp_f32", "v_log_f32", "v_rcp_f32", "v_rsq_f32", "v_sqrt_f32", "v_sin_f32", "v_cos_f32")


def regs_of(tok):
    out = []
    for m in _REG.finditer(tok):
        if m.group(1):
            out.append((m.group(1), int(m.group(2))))
        else:
            out += [(m.group(3), i) for i in range(int(m.group(4)), int(m.group(5)) + 1)]
    if re.search(r"\bvcc\b", tok):
        out.append(("s", "vcc"))
    if re.search(r"\bm0\b", tok):
        out.append(("s", "m0"))
    if re.search(r"\bexec\b", tok):
        out.append(("s", "exec"))
    return out


class Ins:
    def __init__(self, text):
        self.text = text
        parts = text.split(None, 1)
        self.op = parts[0]
        rest = parts[1] if len(parts) > 1 else ""
        rest = rest.split(";")[0]
        ops = [x.strip() for x in rest.split(",")] if rest else []
        self.ops = ops
        op = self.op
        self.is_mfma = op.startswith("v_mfma")
        self.is_valu = op.startswith("v_") and not self.is_mfma
        self.is_ds = op.startswith("ds_")
        self.is_vmem = op.startswith(("buffer_", "global_"))
        self.is_smem = op.startswith(("s_load", "s_memtime", "s_memrealtime"))
        self.is_lds_dma = self.is_vmem and re.search(r"\blds\b", rest) is not None
        self.rd, self.wr = [], []
        self.addr_rd = []
        R = [regs_of(x) for x in ops]
        if self.is_mfma:
            self.wr = R[0]
            self.srca, self.srcb, self.srcc = R[1], R[2], R[3]
            self.rd = R[1] + R[2] + R[3]
            self.passes = 8 if "32x32" in op else 4
        elif self.is_ds:
            if op.startswith("ds_read") or op.startswith("ds_bpermute") or op.startswith("ds_swizzle"):
                self.wr = R[0]
                self.rd = sum(R[1:], [])
            else:
                self.rd = sum(R, [])
        elif self.is_vmem:
            if self.is_lds_dma:
                self.rd = sum(R, []) + [("s", "m0")]
            elif "store" in op:
                self.rd = sum(R, [])
                self.store_data = R[0] if op.startswith("buffer_") else R[1]
            elif "atomic" in op:
                self.rd = sum(R, [])
            else:
                self.wr = R[0]
                self.rd = sum(R[1:], [])
        elif op.startswith("s_cmp") or op.startswith("s_cbranch") or op in ("s_branch", "s_waitcnt", "s_nop", "s_barrier", "s_endpgm", "s_setprio", "s_sleep"):
            self.rd = sum(R, [])
        elif op.startswith("v_cmp"):
            self.wr = R[0]
            self.rd = sum(R[1:], [])
        elif op.startswith("v_permlane") and "swap" in op:
            self.wr = R[0] + R[1]
            self.rd = R[0] + R[1]
        elif op.startswith(("v_fmac", "v_dot2c", "v_pk_fmac")):
            self.wr = R[0]
            self.rd = sum(R, [])
        elif op in ("v_add_co_u32", "v_addc_co_u32", "v_sub_co_u32"):
            self.wr = R[0] + R[1]
            self.rd = sum(R[2:], [])
        elif op.startswith("v_cndmask"):
            self.wr = R[0]
            self.rd = sum(R[1:], [])
            if len(ops) == 3:
                self.rd.append(("s", "vcc"))
        elif op == "s_setpc_b64":
            self.rd = R[0]
        else:
            self.wr = R[0] if R else []
            self.rd = sum(R[1:], [])
            if op.endswith("saveexec_b64"):
                self.wr = self.wr + [("s", "exec")]
        self.is_trans = op.split("_e")[0] in TRANS or op in TRANS
        self.is_dpp = "dpp" in text or "row_" in text or "quad_perm" in text
        m = re.match(r"s_nop (\d+)", text)
        self.states = int(m.group(1)) + 1 if m else 1


def trace(lines, loop_trips=2, take=None):
    take = take or set()
    labels = {ln[:-1]: i for i, ln in enumerate(lines) if ln.endswith(":")}
    out = []
    pc = 0
    cnt = {}
    steps = 0
    while pc < len(lines):
        ln = lines[pc]
        steps += 1
        assert steps < 2_000_000
        if ln.endswith(":") or ln.startswith(";"):
            pc += 1
            continue
        ins = Ins(ln)
        ins.pc = pc
        out.append(ins)
        if ins.op == "s_endpgm":
            break
        if ins.op == "s_branch":
            tgt = labels[ins.ops[0]]
            if tgt <= pc:
                k = cnt.get(pc, 0)
                if k >= loop_trips:
                    break
                cnt[pc] = k + 1
            pc = tgt
            continue
        if ins.op.startswith("s_cbranch"):
            tgt = labels[ins.ops[0]]
            if tgt <= pc:
                k = cnt.get(pc, 0)
                if k < loop_trips - 1:
                    cnt[pc] = k + 1
                    pc = tgt
                    continue
                cnt[pc] = 0
            elif ins.ops[0] in take:
                take = take - {ins.ops[0]}
                pc = tgt
                continue
        pc += 1
    return out


def check(kern, loop_trips=2, take=None, verbose=True):
    tr = trace(kern.lines, loop_trips, take)
    errs = []

    def err(i, msg):
        errs.append(f"{kern.name}: line {tr[i].pc}: {tr[i].text}   <- {msg}")

    WIN = 24
    for i, ins in enumerate(tr):
        dist = 0
        rd, wr = set(ins.rd), set(ins.wr)
        for j in range(i - 1, max(-1, i - WIN), -1):
            p = tr[j]
            need = 0
            pw = set(p.wr)
            if p.is_valu and ins.is_mfma and pw & rd:
                need = max(need, 2)
            if p.is_mfma:
                np_ = p.passes
                if ins.is_mfma:
                    if pw & (set(ins.srca) | set(ins.srcb)):
                        need = max(need, np_ + 4)
                    if pw & set(ins.srcc):
                        if not (p.wr == ins.srcc and p.passes == ins.passes):
                            need = max(need, np_ + 2)
                elif (ins.is_valu or ins.is_ds or ins.is_vmem) and pw & (rd | wr):
                    need = max(need, np_ + 4)
                if ins.is_valu and set(p.srcc) & wr:
                    need = max(need, np_ - 1)
            if p.is_valu and p.is_trans and ins.is_valu and not ins.is_trans and pw & rd:
                need = max(need, 1)
            if p.is_valu and p.is_trans and ins.is_valu and ins.is_trans and pw & rd:
                need = max(need, 1)
            if p.is_valu:
                sw = {r for r in pw if r[0] == "s"}
                if sw & rd:
                    if ins.is_vmem:
                        need = max(need, 5)
                    elif ins.is_valu:
                        need = max(need, 4 if ins.op.startswith(("v_readlane", "v_writelane")) else 2)
                vw = pw - sw
                if vw & rd:
                    if ins.op.startswith(("v_readfirstlane", "v_readlane")):
                        need = max(need, 1)
                    if ins.op.startswith("v_permlane") or ins.is_dpp:
                        need = max(need, 2)
                if ("s", "exec") in pw and (ins.is_mfma):
                    need = max(need, 4)
            if not p.is_valu and not p.is_mfma and ("s", "m0") in pw and ins.is_lds_dma:
                need = max(need, 1)
            if p.is_vmem and hasattr(p, "store_data") and len(p.store_data) >= 3 and set(p.store_data) & wr:
                need = max(need, 2 if ins.is_valu else 1)
            if need > dist:
                err(i, f"needs {need} wait states after '{p.text}' (has {dist})")
            dist += p.states
            if dist >= 20:
                break

    vmq, lgq = [], []
    for i, ins in enumerate(tr):
        if ins.op == "s_waitcnt":
            m = re.search(r"vmcnt\((\d+)\)", ins.text)
            if m:
                n = int(m.group(1))
                vmq = vmq[len(vmq) - n:] if n and len(vmq) > n else ([] if n == 0 else vmq)
            m = re.search(r"lgkmcnt\((\d+)\)", ins.text)
            if m:
                n = int(m.group(1))
                if n and any(x[0] == "smem" for x in lgq):
                    err(i, "counted lgkmcnt with SMEM outstanding")
                lgq = lgq[len(lgq) - n:] if n and len(lgq) > n else ([] if n == 0 else lgq)
            continue
        touched = set(ins.rd) | set(ins.wr)
        for q, nm in ((vmq, "vmcnt"), (lgq, "lgkmcnt")):
            for kind, regs, txt in q:
                hit = regs & touched
                if hit:
                    if (ins.is_vmem or ins.is_ds) and not (regs & set(ins.rd)) and kind == ("vm" if ins.is_vmem else "ds"):
                        continue
                    err(i, f"touches {sorted(hit)[:2]} pending on {nm} from '{txt}'")
        if ins.is_vmem:
            vmq.append(("vm", set(ins.wr), ins.text))
            if len(vmq) > 63:
                err(i, "more than 63 VMEM ops outstanding")
                vmq = vmq[-63:]
        elif ins.is_ds:
            lgq.append(("ds", set(ins.wr), ins.text))
            if len(lgq) > 15:
                pass
        elif ins.is_smem:
            lgq.append(("smem", set(ins.wr), ins.text))
    if verbose:
        nm = sum(1 for x in tr if x.is_mfma)
        print(f"[check] {kern.name}: {len(tr)} traced instrs, {nm} mfma, {len(errs)} problems")
    return errs
```

```python
from asmlib import *
from layout import *
from k_pre import srd

V_LANE = 1
V_T0 = 2
V_KA = 10
V_VA = 18
V_DK = 22
V_DV = 26
V_L = 28
V_E = 32
V_S = 40
V_NM = 104
V_P = 136
V_Q = 168
V_QACC = 40
V_WA = 232
V_HO = 240
V_WD = 241
A_O = 0
A_KF = 128
A_VF = 160
A_WF = 128
S_K, S_V, S_W, S_H, S_OO = 8, 12, 16, 20, 24
S_WOFF = 28
S_KT = 29
S_VT = 30
S_TMP = 31
S_LOOP = 32
S_SECOND = 33
S_WOFF8 = 34

S_PF0, S_PF1 = 64, 68
V_PF = 242
HEADS_PER_XCD = 4
HD = 4
W_UPFRONT = False
KV_AT = 24
COOP_PF = False
SKIP_H = False
SKIP_W = False
SKIP_KV = False
PREFETCH = True

KSLOT = lambda t: (t % 4) * 16384
VSLOT = lambda t: 65536 + (t % 4) * 16384
WREG = [0, 65536, 32768, 98304]
LDS_FLAG = 131072
ATTN_LDS = 131072 + 64
L_LIMIT = 2.0 ** 30


def S(par, qb):
    return V_S + (par * 2 + qb) * 16


def P(par, qb):
    return V_P + (par * 2 + qb) * 8


def O(qb, db):
    return A_O + (qb * 4 + db) * 16


def mf(d, A, B, C):
    return f"v_mfma_f32_32x32x16_bf16 {d}, {A}, {B}, {C}"


def qk_mfmas(par, use_negm=True):
    out = []
    for qb in range(2):
        for j in range(8):
            d = v(S(par, qb), 16)
            c = d if j else (v(V_NM + 16 * qb, 16) if use_negm else "0")
            out.append(mf(d, a(A_KF + 4 * j, 4), v(V_Q + (qb * 8 + j) * 4, 4), c))
    return out


def pv_mfmas(par):
    out = []
    for qb in range(2):
        for kh in range(2):
            for db in range(4):
                d = a(O(qb, db), 16)
                out.append(mf(d, a(A_VF + (db * 2 + kh) * 4, 4), v(P(par, qb) + 4 * kh, 4), d))
    return out


def k_reads(tile, half):
    return [f"ds_read_b128 {a(A_KF + 4 * j, 4)}, {v(V_KA + j)} offset:{KSLOT(tile) + half * 8192}" for j in range(8)]


def v_reads(tile, half):
    out = []
    for kh in range(2):
        for db in range(4):
            for p in range(2):
                off = (tile % 4) * 16384 + half * 8192 + kh * 4096 + p * 2048
                out.append(f"ds_read_b64_tr_b16 {a(A_VF + (db * 2 + kh) * 4 + 2 * p, 2)}, {v(V_VA + db)} offset:{off}")
    return out


def softmax_seq(par, qbs=(0, 1)):
    seq, pend = [], []
    g = 0
    for qb in qbs:
        for pr in range(8):
            t = V_E + 2 * (g % 2)
            s0 = S(par, qb) + 2 * pr
            seq.append(f"v_exp_f32 {v(t)}, {v(s0)}")
            if pend:
                seq.append(pend.pop(0))
            seq.append(f"v_exp_f32 {v(t + 1)}, {v(s0 + 1)}")
            seq += pend
            pend = [f"v_add_f32 {v(V_L + 2 * qb)}, {v(V_L + 2 * qb)}, {v(t)}",
                    f"v_add_f32 {v(V_L + 2 * qb + 1)}, {v(V_L + 2 * qb + 1)}, {v(t + 1)}",
                    f"v_cvt_pk_bf16_f32 {v(P(par, qb) + pr)}, {v(t)}, {v(t + 1)}"]
            g += 1
    seq.append("s_nop 0")
    seq += pend
    return seq


def dma_k(k, slot_tile, tag):
    out = [f"s_add_u32 m0, {s(S_WOFF)}, {KSLOT(slot_tile)}"]
    for i in range(4):
        out.append((f"buffer_load_dwordx4 {v(V_DK + i)}, {s(S_K, 4)}, {s(S_KT)} offen offset:{i * 1024} lds", tag))
    return out


def dma_v(k, slot_tile, tag):
    out = [f"s_add_u32 m0, {s(S_WOFF)}, {VSLOT(slot_tile)}"]
    for i in range(4):
        out.append((f"buffer_load_dwordx4 {v(V_DV)}, {s(S_V, 4)}, {s(S_VT)} offen offset:{i * 1024} lds", tag))
    return out


def adv(sreg):
    return [f"s_add_u32 {s(sreg)}, {s(sreg)}, 16384", f"s_min_u32 {s(sreg)}, {s(sreg)}, {31 * 16384}"]


def emit_plain(k, items):
    for it in items:
        if isinstance(it, tuple):
            k.vmem(it[0], it[1])
        else:
            k.e(it)


def strip_tags(k, items):
    emit_plain(k, items)


def iteration(k, i, last_qk=63, last_sm=63, final=False):
    par_pv = i & 1
    par_sm = (i + 1) & 1
    par_qk = i & 1
    do_qk = i + 2 <= last_qk
    do_sm = i + 1 <= last_sm
    mf_list = pv_mfmas(par_pv) + (qk_mfmas(par_qk) if do_qk else [])
    n = len(mf_list)
    pre, post = {}, {}

    def add(dct, g, x):
        dct.setdefault(g, []).append(x)

    add(pre, 0, "s_waitcnt lgkmcnt(0)")
    if do_qk:
        kr = k_reads(((i + 2) >> 1), i & 1)
        for r, x in enumerate(kr):
            add(post, r * 3 // 2, x)
        add(pre, 16, "s_waitcnt lgkmcnt(0)")
    odd = i & 1
    t = (i + 1) >> 1
    vr = v_reads((i + 1) >> 1, (i + 1) & 1) if i + 1 <= 63 else []
    if do_qk:
        if odd:
            add(pre, 16, "s_waitcnt vmcnt(16)")
            add(pre, 16, "s_barrier")
        for r, x in enumerate(vr):
            add(post, 16 + (r * 13) // 16, x)
        if odd:
            d = dma_k(k, t + 4, None)
            add(post, 17, d[0])
            for q in range(4):
                ins = d[1 + q][0]
                if PREFETCH and i == 57 and final and q < 2:
                    ins = f"buffer_load_dword {v(V_PF + 1 + q)}, {v(V_PF)}, {s((S_PF0, S_PF1)[q], 4)}, 0 offen"
                add(post, 18 + 3 * q, ins)
            for q, x in enumerate(adv(S_KT)):
                add(post, 29 + q, x)
        else:
            d = dma_v(k, (i >> 1) + 3, None)
            add(post, 1, d[0])
            for q in range(4):
                add(post, 2 + 3 * q, d[1 + q][0])
            for q, x in enumerate(adv(S_VT)):
                add(post, 13 + q, x)
    else:
        if vr:
            if odd:
                add(pre, 16, "s_waitcnt lgkmcnt(0)")
                add(pre, 16, "s_waitcnt vmcnt(0)")
                add(pre, 16, "s_barrier")
            for x in vr:
                add(pre, 16, x)
    flow = softmax_seq(par_sm) if do_sm else []
    hi = n if do_qk else n
    out = interleave(mf_list, pre, post, flow, 0, hi)
    for x in out:
        k.e(x)


def gen_attn():
    k = Kern("attn_kernel", vgpr=256, agpr=256, sgpr=72 if not Kern.STAMPS else 100)
    e = k.e
    e("s_cmp_ge_u32 s2, 256")
    e("s_cbranch_scc1 L_at_end")
    k.stamp()
    e("s_load_dwordx4 s[36:39], s[0:1], 8")
    e("s_load_dwordx2 s[40:41], s[0:1], 24")
    e("s_load_dwordx2 s[42:43], s[0:1], 112")
    if PREFETCH:
        e("s_load_dwordx2 s[52:53], s[0:1], 32")
        e("s_load_dwordx4 s[56:59], s[0:1], 48")
        e("s_load_dwordx4 s[60:63], s[0:1], 64")
    e(f"v_and_b32 {v(V_LANE)}, 63, v0")
    e("v_lshrrev_b32 v2, 6, v0")
    e("s_nop 0")
    e("v_readfirstlane_b32 s44, v2")
    if HEADS_PER_XCD == 4:
        e("s_and_b32 s45, s2, 7")
        e("s_lshr_b32 s46, s2, 6")
        e("s_lshl_b32 s46, s46, 3")
        e("s_add_u32 s45, s45, s46")
        e("s_lshr_b32 s46, s2, 3")
        e("s_and_b32 s46, s46, 7")
    else:
        e("s_and_b32 s47, s2, 7")
        e("s_lshr_b32 s48, s2, 3")
        e("s_lshr_b32 s45, s47, 1")
        e("s_lshl_b32 s45, s45, 3")
        e("s_lshr_b32 s49, s48, 2")
        e("s_add_u32 s45, s45, s49")
        e("s_and_b32 s46, s47, 1")
        e("s_lshl_b32 s46, s46, 2")
        e("s_and_b32 s49, s48, 3")
        e("s_add_u32 s46, s46, s49")
    e(f"s_lshl_b32 {s(S_WOFF)}, s44, 12")
    e(f"s_lshl_b32 {s(S_WOFF8)}, s44, 13")
    e(f"s_mov_b32 {s(S_SECOND)}, 0")
    e("s_waitcnt lgkmcnt(0)")
    e("s_lshl_b32 s47, s45, 19")
    srd(k, S_K, 36, 0, 524288, add_sgpr=47)
    srd(k, S_V, 38, 0, 524288, add_sgpr=47)
    e("s_lshl_b32 s47, s45, 8")
    srd(k, S_W, 40, 0, 0, add_sgpr=47)
    e(f"s_sub_u32 {s(S_W + 2)}, {512 * 8192}, s47")
    e("s_lshl_b32 s48, s46, 3")
    e("s_lshl_b32 s49, s44, 1")
    e("s_add_u32 s48, s48, s49")
    e("s_lshl_b32 s47, s48, 15")
    srd(k, S_H, 42, OFF_H0, 65536, add_sgpr=47)
    e("s_lshl_b32 s47, s48, 18")
    e("s_lshl_b32 s49, s45, 13")
    e("s_add_u32 s47, s47, s49")
    srd(k, S_OO, 42, OFF_O, 262144 + 8192, add_sgpr=47)

    pf2 = []
    if COOP_PF:
        assert HEADS_PER_XCD == 4
        L = V_LANE
        e("s_lshr_b32 s49, s2, 6")
        e("s_lshl_b32 s49, s49, 2")
        e("s_add_u32 s49, s49, s44")
        e("s_lshl_b32 s50, s46, 18")
        e("s_add_u32 s4, s42, s50")
        e("s_addc_u32 s5, s43, 0")
        e(f"s_add_u32 s4, s4, {OFF_H0}")
        e("s_addc_u32 s5, s5, 0")
        e("s_mov_b32 s6, 262144")
        e("s_mov_b32 s7, 0x00020000")
        e("s_lshr_b32 s50, s49, 1")
        e("s_lshl_b32 s50, s50, 15")
        e("s_and_b32 s49, s49, 1")
        e("s_lshl_b32 s49, s49, 13")
        e("s_add_u32 s35, s49, s50")
        e(f"v_lshrrev_b32 v2, 3, {v(L)}")
        e(f"v_and_b32 v3, 7, {v(L)}")
        e("v_lshlrev_b32 v2, 10, v2")
        e("v_lshl_add_u32 v250, v3, 7, v2")
        k.vmem("buffer_load_dword v246, v250, s[4:7], s35 offen", "pf")
        pf2 = ["s_add_u32 s35, s35, 16384", ("buffer_load_dword v247, v250, s[4:7], s35 offen", "pf")]
    L = V_LANE
    e(f"v_lshrrev_b32 v2, 4, {v(L)}")
    e(f"v_and_b32 v3, 15, {v(L)}")
    e("v_lshlrev_b32 v4, 2, v2")
    e("v_xor_b32 v4, v4, v3")
    e("v_lshlrev_b32 v5, 4, v4")
    e(f"v_lshl_add_u32 {v(V_WD)}, v2, 13, v5")
    e("s_lshl_b32 s47, s44, 18")
    e(f"v_add_u32 {v(V_WD)}, s47, {v(V_WD)}")
    e(f"v_lshl_add_u32 {v(V_DV)}, v2, 8, v5")
    e(f"v_add_u32 {v(V_DV)}, {s(S_WOFF)}, {v(V_DV)}")
    for i in range(4):
        e(f"v_add_u32 v6, {4 * i}, v2")
        e("v_xor_b32 v6, v6, v3")
        e("v_lshlrev_b32 v6, 4, v6")
        e(f"v_lshl_add_u32 {v(V_DK + i)}, v2, 8, v6")
        e(f"v_add_u32 {v(V_DK + i)}, {s(S_WOFF)}, {v(V_DK + i)}")
    e(f"v_lshlrev_b32 {v(V_HO)}, 4, {v(L)}")
    def w_dma(c):
        items = []
        if SKIP_W and c > 0:
            return items
        for i in range(8):
            if i % 4 == 0:
                items.append(f"s_add_u32 m0, {s(S_WOFF8)}, {WREG[c] + (i & 4) * 1024}")
            items.append(f"s_mov_b32 {s(S_TMP)}, {(128 * c + 4 * i) * 8192 - (i & 3) * 1024}")
            items.append((f"buffer_load_dwordx4 {v(V_WD)}, {s(S_W, 4)}, {s(S_TMP)} offen offset:{(i & 3) * 1024} lds", f"W{c}"))
        return items

    def hreg(kc, qb):
        return A_O + ((kc % 16) * 2 + qb) * 4

    def h_load(kc, qb):
        if SKIP_H and kc > 0:
            return []
        return [f"s_mov_b32 {s(S_TMP + 20)}, {qb * 32768 + (kc & ~3) * 1024}",
                (f"buffer_load_dwordx4 {a(hreg(kc, qb), 4)}, {v(V_HO)}, {s(S_H, 4)}, {s(S_TMP + 20)} offen offset:{(kc & 3) * 1024}", f"h{kc}")]

    def h_loads(c):
        items = []
        for kc in range(8 * c, 8 * c + 8):
            for qb in range(2):
                items += h_load(kc, qb)
        return items

    emit_plain(k, w_dma(0))
    if W_UPFRONT:
        for c in range(1, 4):
            emit_plain(k, w_dma(c))
    for kc in range(HD):
        for qb in range(2):
            emit_plain(k, h_load(kc, qb))
    emit_plain(k, pf2)
    if PREFETCH:
        e("s_and_b32 s47, s2, 3")
        e("s_lshl_b32 s47, s47, 20")
        e("s_lshr_b32 s48, s2, 3")
        e("s_lshl_b32 s48, s48, 2")
        e("s_add_u32 s48, s48, s44")
        e("s_lshl_b32 s48, s48, 13")
        e("s_add_u32 s47, s47, s48")
        e(f"s_add_u32 {s(S_PF0)}, s52, s47")
        e(f"s_addc_u32 {s(S_PF0 + 1)}, s53, 0")
        e(f"s_mov_b32 {s(S_PF0 + 2)}, 8192")
        e(f"s_mov_b32 {s(S_PF0 + 3)}, 0x00020000")
        e("s_lshl_b32 s47, s2, 2")
        e("s_add_u32 s47, s47, s44")
        e("s_mov_b32 s48, s56")
        e("s_mov_b32 s49, s57")
        e("s_mov_b32 s50, 0")
        for lo, reg in ((64, 58), (128, 60), (352, 62)):
            e(f"s_cmp_ge_u32 s47, {lo}")
            e(f"s_cselect_b32 s48, s{reg}, s48")
            e(f"s_cselect_b32 s49, s{reg + 1}, s49")
            e(f"s_cselect_b32 s50, {lo}, s50")
        e("s_sub_u32 s50, s47, s50")
        e("s_lshl_b32 s50, s50, 13")
        e(f"s_add_u32 {s(S_PF1)}, s48, s50")
        e(f"s_addc_u32 {s(S_PF1 + 1)}, s49, 0")
        e("s_cmp_lt_u32 s47, 576")
        e(f"s_cselect_b32 {s(S_PF1 + 2)}, 8192, 0")
        e(f"s_mov_b32 {s(S_PF1 + 3)}, 0x00020000")
        e(f"v_lshlrev_b32 {v(V_PF)}, 7, {v(V_LANE)}")
    e(f"v_and_b32 v4, 31, {v(L)}")
    e(f"v_lshrrev_b32 v5, 5, {v(L)}")
    e("v_and_b32 v6, 15, v4")
    e("v_xor_b32 v6, v6, v5")
    for j in range(8):
        e(f"v_xor_b32 v7, {2 * j}, v6")
        e("v_lshlrev_b32 v7, 4, v7")
        e(f"v_lshl_add_u32 {v(V_KA + j)}, v4, 8, v7")
    e("v_lshrrev_b32 v6, 2, v3")
    e(f"v_and_b32 v7, 3, {v(L)}")
    e("v_and_b32 v8, 1, v2")
    e("v_and_b32 v9, 1, v7")
    e("v_lshl_add_u32 v9, v8, 1, v9")
    e("v_lshlrev_b32 v9, 4, v9")
    e("v_lshrrev_b32 v7, 1, v7")
    e("v_lshl_add_u32 v9, v7, 3, v9")
    e("v_lshl_add_u32 v9, v6, 8, v9")
    for db in range(4):
        e(f"v_xor_b32 v7, {db}, v6")
        e("v_lshl_add_u32 v7, v7, 6, v9")
        e(f"v_lshl_add_u32 {v(V_VA + db)}, v5, 10, v7")
        e(f"v_add_u32 {v(V_VA + db)}, 65536, {v(V_VA + db)}")
        e(f"v_lshl_add_u32 {v(V_WA + db)}, v5, 11, v7")
        e(f"v_add_u32 {v(V_WA + 4 + db)}, 65536, {v(V_WA + db)}")
    for q in range(4):
        e(f"v_mov_b32 {v(V_L + q)}, 0")
    e(f"v_mov_b32 v2, 0")
    e(f"v_mov_b32 v3, {LDS_FLAG}")
    e("ds_write_b32 v3, v2")

    def w_reads(ks):
        c, kl = ks >> 3, ks & 7
        base = WREG[c] & 0xFFFF
        hi = 4 if WREG[c] >= 65536 else 0
        out = []
        for db in range(4):
            for p in range(2):
                out.append(f"ds_read_b64_tr_b16 {a(A_WF + (ks & 1) * 16 + db * 4 + 2 * p, 2)}, {v(V_WA + hi + db)} offset:{base + kl * 4096 + p * 1024}")
        return out

    def qacc(db, qb):
        return V_QACC + (db * 2 + qb) * 16

    e(k.vm_wait(["W0"]))
    e("s_waitcnt lgkmcnt(0)")
    e("s_barrier")
    k.stamp()
    emit_plain(k, w_reads(0))
    e(f"s_mov_b32 {s(S_KT)}, 0")
    e(f"s_mov_b32 {s(S_VT)}, 0")
    SCHED = {
        "W1": w_dma(1), "W2": w_dma(2), "W3": w_dma(3),
        "K01": dma_k(k, 0, "K0") + adv(S_KT) + dma_k(k, 1, "K1") + adv(S_KT),
        "V0": dma_v(k, 0, "V0") + adv(S_VT),
    }
    late = (dma_v(k, 1, "V1") + adv(S_VT) + dma_k(k, 2, "K2") + adv(S_KT) + dma_k(k, 3, "K3") + adv(S_KT)
            + dma_v(k, 2, "V2") + adv(S_VT))
    if SKIP_KV:
        for key in ("K01", "V0"):
            SCHED[key] = []
    for ks in range(32):
        c, kl = ks >> 3, ks & 7
        mfs = []
        for db in range(4):
            for qb in range(2):
                d = v(qacc(db, qb), 16)
                mfs.append(mf(d, a(A_WF + (ks & 1) * 16 + db * 4, 4), a(hreg(ks, qb), 4), d if ks else "0"))
        pre, post = {}, {}
        extra = []
        w = k.vm_wait([f"h{ks}"])
        pre[0] = ["s_waitcnt lgkmcnt(0)"] + ([w] if w else [])
        nxt = w_reads(ks + 1) if ks + 1 < 32 else []
        if kl == 7 and ks + 1 < 32:
            w2 = k.vm_wait([f"W{c + 1}"])
            pre[0] += ([w2] if w2 else []) + ["s_barrier"]
        if ks + HD < 32:
            for qb in range(2):
                extra += h_load(ks + HD, qb)
        def part(items, lo, n):
            groups, cur = [], []
            for it in items:
                cur.append(it)
                if isinstance(it, tuple):
                    groups.append(cur); cur = []
            if cur and groups:
                groups[-1] += cur
            per = (len(groups) + n - 1) // n
            i = ks - lo
            if 0 <= i < n:
                return sum(groups[i * per:(i + 1) * per], [])
            return []
        if not W_UPFRONT:
            extra += part(SCHED["W1"], 0, 4) + part(SCHED["W2"], 4, 4) + part(SCHED["W3"], 10, 4)
        extra += part(SCHED["K01"], KV_AT, 4) + part(SCHED["V0"], KV_AT + 4, 2)
        zero = []
        if ks >= 17:
            for qb in range(2):
                zero += [f"v_accvgpr_write_b32 {a(hreg(ks - 1, qb) + q)}, 0" for q in range(4)]
        stream = []
        gaps = {g: [] for g in range(8)}
        for r, x in enumerate(nxt):
            gaps[min(r, 5)].append(x)
        for r, x in enumerate(extra):
            gaps[min(7, r * 8 // max(1, len(extra)))].append(x)
        for r, x in enumerate(zero):
            gaps[r].append(x)
        for x in pre[0]:
            e(x)
        for g in range(8):
            e(mfs[g])
            emit_plain(k, gaps[g])
    e("s_barrier")
    for qb in range(2):
        for q in range(4):
            e(f"v_accvgpr_write_b32 {a(hreg(31, qb) + q)}, 0")
    e("s_nop 4")
    order = [(db, qb) for db in range(4) for qb in range(2)]
    cv = []
    for db, qb in order:
        for kap in range(2):
            for m in range(4):
                src = qacc(db, qb) + 8 * kap + 2 * m
                cv.append(f"v_cvt_pk_bf16_f32 {v(V_Q + (qb * 8 + 2 * db + kap) * 4 + m)}, {v(src)}, {v(src + 1)}")
    for i_, x in enumerate(cv):
        e(x)
        lo, hi = i_ * len(late) // len(cv), (i_ + 1) * len(late) // len(cv)
        emit_plain(k, late[lo:hi])

    k.stamp()
    e(k.vm_wait(["K0"]))
    e("s_barrier")
    emit_plain(k, k_reads(0, 0))
    e("s_waitcnt lgkmcnt(0)")
    for x in qk_mfmas(0, use_negm=False):
        e(x)
    emit_plain(k, k_reads(0, 1))
    for qb in range(2):
        if qb == 0:
            e("s_nop 3")
        b = S(0, qb)
        m = V_T0 + qb
        if qb == 1:
            e("s_nop 3")
        e(f"v_max3_f32 {v(m)}, {v(b)}, {v(b + 1)}, {v(b + 2)}")
        for q in range(3, 15, 2):
            e(f"v_max3_f32 {v(m)}, {v(m)}, {v(b + q)}, {v(b + q + 1)}")
        e(f"v_max_f32 {v(m)}, {v(m)}, {v(b + 15)}")
    for qb in range(2):
        m = V_T0 + qb
        e(f"v_mov_b32 {v(V_T0 + 2 + qb)}, {v(m)}")
    e("s_nop 1")
    for qb in range(2):
        e(f"v_permlane32_swap_b32 {v(V_T0 + qb)}, {v(V_T0 + 2 + qb)}")
    e("s_nop 1")
    for qb in range(2):
        e(f"v_max_f32 {v(V_T0 + qb)}, {v(V_T0 + qb)}, {v(V_T0 + 2 + qb)}")
        e(f"v_sub_f32 {v(V_T0 + qb)}, 0, {v(V_T0 + qb)}")
    for qb in range(2):
        for q in range(16):
            e(f"v_mov_b32 {v(V_NM + 16 * qb + q)}, {v(V_T0 + qb)}")
        for q in range(16):
            e(f"v_add_f32 {v(S(0, qb) + q)}, {v(S(0, qb) + q)}, {v(V_T0 + qb)}")
    k.label("L_at_step1")
    e("s_waitcnt lgkmcnt(0)")
    out = interleave(qk_mfmas(1), {}, {}, softmax_seq(0))
    for x in out:
        e(x)
    e("s_waitcnt vmcnt(16)")
    e("s_barrier")
    emit_plain(k, v_reads(0, 0))
    emit_plain(k, [x[0] if isinstance(x, tuple) else x for x in dma_k(k, 4, None)] + adv(S_KT))

    k.stamp()
    e(f"s_mov_b32 {s(S_LOOP)}, 7")
    k.label("L_at_loop")
    for i in range(8):
        iteration(k, i)
    e(f"s_sub_u32 {s(S_LOOP)}, {s(S_LOOP)}, 1")
    e(f"s_cmp_lg_u32 {s(S_LOOP)}, 0")
    e("s_cbranch_scc1 L_at_loop")
    for i in range(56, 64):
        iteration(k, i, final=True)

    k.stamp()
    for qb in range(2):
        e(f"v_add_f32 {v(V_L + 2 * qb)}, {v(V_L + 2 * qb)}, {v(V_L + 2 * qb + 1)}")
    for qb in range(2):
        e(f"v_mov_b32 {v(V_L + 2 * qb + 1)}, {v(V_L + 2 * qb)}")
    e("s_nop 1")
    for qb in range(2):
        e(f"v_permlane32_swap_b32 {v(V_L + 2 * qb)}, {v(V_L + 2 * qb + 1)}")
    e("s_nop 1")
    for qb in range(2):
        e(f"v_add_f32 {v(V_L + 2 * qb)}, {v(V_L + 2 * qb)}, {v(V_L + 2 * qb + 1)}")
    e(f"v_max_f32 v2, {v(V_L)}, {v(V_L + 2)}")
    e(f"v_mov_b32 v3, {f32hex(L_LIMIT)}")
    e("v_cmp_nlt_f32 vcc, v2, v3")
    e(f"v_cmp_u_f32 s[50:51], {v(V_L)}, {v(V_L + 2)}")
    e("s_nop 1")
    e("s_or_b64 vcc, vcc, s[50:51]")
    e("s_cbranch_vccz L_at_ok")
    e("v_mov_b32 v2, 1")
    e(f"v_mov_b32 v3, {LDS_FLAG}")
    e("ds_write_b32 v3, v2")
    k.label("L_at_ok")
    e("s_waitcnt lgkmcnt(0) vmcnt(0)")
    e("s_barrier")
    e(f"v_mov_b32 v3, {LDS_FLAG}")
    e("ds_read_b32 v2, v3")
    e("s_waitcnt lgkmcnt(0)")
    e("v_readfirstlane_b32 s50, v2")
    e(f"s_xor_b32 s51, {s(S_SECOND)}, 1")
    e("s_and_b32 s50, s50, s51")
    e("s_cmp_eq_u32 s50, 1")
    e("s_cbranch_scc1 L_at_redo")
    for qb in range(2):
        e(f"v_rcp_f32 {v(V_L + 2 * qb)}, {v(V_L + 2 * qb)}")
    for qb in range(2):
        for db in range(4):
            for kap in range(2):
                j = 2 * db + kap
                t = V_S + ((qb * 8 + j) % 4) * 12
                for q in range(8):
                    e(f"v_accvgpr_read_b32 {v(t + q)}, {a(O(qb, db) + 8 * kap + q)}")
                for q in range(8):
                    e(f"v_mul_f32 {v(t + q)}, {v(V_L + 2 * qb)}, {v(t + q)}")
                for m in range(4):
                    e(f"v_cvt_pk_bf16_f32 {v(t + 8 + m)}, {v(t + 2 * m)}, {v(t + 2 * m + 1)}")
                if (j & 3) == 0:
                    e(f"s_mov_b32 {s(S_TMP)}, {qb * 262144 + (j & 4) * 1024}")
                e(f"buffer_store_dwordx4 {v(t + 8, 4)}, {v(V_HO)}, {s(S_OO, 4)}, {s(S_TMP)} offen offset:{(j & 3) * 1024}")
    k.stamp()
    if Kern.STAMPS:
        e("s_waitcnt vmcnt(0)")
    k.stamp()
    k.stamp_flush(1)
    e("s_endpgm")

    k.label("L_at_redo")
    e(f"s_mov_b32 {s(S_SECOND)}, 1")
    e(f"s_mov_b32 {s(S_KT)}, 0")
    e(f"s_mov_b32 {s(S_LOOP)}, 32")
    e(f"v_mov_b32 {v(V_T0)}, 0xff800000")
    e(f"v_mov_b32 {v(V_T0 + 1)}, 0xff800000")
    k.label("L_at_maxloop")
    e("s_barrier")
    emit_plain(k, [x[0] if isinstance(x, tuple) else x for x in dma_k(k, 0, None)])
    e(f"s_add_u32 {s(S_KT)}, {s(S_KT)}, 16384")
    e("s_waitcnt vmcnt(0)")
    e("s_barrier")
    for half in range(2):
        emit_plain(k, k_reads(0, half))
        e("s_waitcnt lgkmcnt(0)")
        for x in qk_mfmas(0, use_negm=False):
            e(x)
        e("s_nop 15")
        for qb in range(2):
            b, m = S(0, qb), V_T0 + qb
            for q in range(0, 16, 2):
                e(f"v_max3_f32 {v(m)}, {v(m)}, {v(b + q)}, {v(b + q + 1)}")
    e(f"s_sub_u32 {s(S_LOOP)}, {s(S_LOOP)}, 1")
    e(f"s_cmp_lg_u32 {s(S_LOOP)}, 0")
    e("s_cbranch_scc1 L_at_maxloop")
    for qb in range(2):
        e(f"v_mov_b32 {v(V_T0 + 2 + qb)}, {v(V_T0 + qb)}")
    e("s_nop 1")
    for qb in range(2):
        e(f"v_permlane32_swap_b32 {v(V_T0 + qb)}, {v(V_T0 + 2 + qb)}")
    e("s_nop 1")
    for qb in range(2):
        e(f"v_max_f32 {v(V_T0 + qb)}, {v(V_T0 + qb)}, {v(V_T0 + 2 + qb)}")
        e(f"v_sub_f32 {v(V_T0 + qb)}, 0, {v(V_T0 + qb)}")
    for qb in range(2):
        for q in range(16):
            e(f"v_mov_b32 {v(V_NM + 16 * qb + q)}, {v(V_T0 + qb)}")
    for q in range(128):
        e(f"v_accvgpr_write_b32 {a(q)}, 0")
    for q in range(4):
        e(f"v_mov_b32 {v(V_L + q)}, 0")
    e("s_barrier")
    e(f"s_mov_b32 {s(S_KT)}, 0")
    e(f"s_mov_b32 {s(S_VT)}, 0")
    plain = lambda items: [x[0] if isinstance(x, tuple) else x for x in items]
    emit_plain(k, plain(dma_k(k, 0, None) + adv(S_KT) + dma_k(k, 1, None) + adv(S_KT)))
    emit_plain(k, plain(dma_v(k, 0, None) + adv(S_VT) + dma_v(k, 1, None) + adv(S_VT)))
    emit_plain(k, plain(dma_k(k, 2, None) + adv(S_KT) + dma_k(k, 3, None) + adv(S_KT)))
    emit_plain(k, plain(dma_v(k, 2, None) + adv(S_VT)))
    e("s_waitcnt vmcnt(24)")
    e("s_barrier")
    emit_plain(k, k_reads(0, 0))
    e("s_waitcnt lgkmcnt(0)")
    for x in qk_mfmas(0):
        e(x)
    emit_plain(k, k_reads(0, 1))
    e("s_nop 7")
    e("s_branch L_at_step1")
    k.label("L_at_end")
    e("s_endpgm")
    return k
```

```python
from asmlib import *
from layout import *


def srd(k, base, ptr_lo, add_bytes, nbytes, add_sgpr=None):
    k.e(f"s_add_u32 {s(base)}, {s(ptr_lo)}, {add_bytes}")
    k.e(f"s_addc_u32 {s(base + 1)}, {s(ptr_lo + 1)}, 0")
    if add_sgpr is not None:
        k.e(f"s_add_u32 {s(base)}, {s(base)}, {s(add_sgpr)}")
        k.e(f"s_addc_u32 {s(base + 1)}, {s(base + 1)}, 0")
    k.e(f"s_mov_b32 {s(base + 2)}, {nbytes}")
    k.e(f"s_mov_b32 {s(base + 3)}, 0x00020000")


def round_bf16(k, dst, src, tmp):
    k.e(f"v_cvt_pk_bf16_f32 {v(tmp)}, {v(src)}, {v(src)}")
    k.e(f"v_lshlrev_b32 {v(dst)}, 16, {v(tmp)}")


PRE_THREADS = 256
ATTN_PF = True
PRE_GRID = 256
NPROD = 64
SPIN_LIMIT = 1 << 17


def silu_regs(k, x, n, t):
    e = k.e
    for i in range(n):
        e(f"v_mul_f32 {v(t + i)}, {f32hex(-LOG2E)}, {v(x + i)}")
    for i in range(n):
        e(f"v_exp_f32 {v(t + i)}, {v(t + i)}")
    e("s_nop 0")
    for i in range(n):
        e(f"v_add_f32 {v(t + i)}, 1.0, {v(t + i)}")
    for i in range(n):
        e(f"v_rcp_f32 {v(t + i)}, {v(t + i)}")
    e("s_nop 0")
    for i in range(n):
        e(f"v_mul_f32 {v(x + i)}, {v(x + i)}, {v(t + i)}")
    for i in range(n):
        e(f"v_cvt_pk_bf16_f32 {v(t + i)}, {v(x + i)}, {v(x + i)}")
    for i in range(n):
        e(f"v_lshlrev_b32 {v(x + i)}, 16, {v(t + i)}")


def row_stats(k, x0, n, lds_off, mean, rstd, vr, rows=8):
    e = k.e
    e(f"v_mov_b32 {v(mean)}, 0")
    e(f"v_mov_b32 {v(rstd)}, 0")
    for q in range(n):
        e(f"v_add_f32 {v(mean)}, {v(mean)}, {v(x0 + q)}")
        e(f"v_fmac_f32 {v(rstd)}, {v(x0 + q)}, {v(x0 + q)}")
    if rows == 8:
        e("s_nop 1")
        e(f"v_add_f32_dpp {v(mean)}, {v(mean)}, {v(mean)} row_ror:8 row_mask:0xf bank_mask:0xf")
        e(f"v_add_f32_dpp {v(rstd)}, {v(rstd)}, {v(rstd)} row_ror:8 row_mask:0xf bank_mask:0xf")
    for swap in ("v_permlane16_swap_b32", "v_permlane32_swap_b32"):
        e(f"v_mov_b32 v8, {v(mean)}")
        e(f"v_mov_b32 v9, {v(rstd)}")
        e("s_nop 1")
        e(f"{swap} {v(mean)}, v8")
        e(f"{swap} {v(rstd)}, v9")
        e("s_nop 1")
        e(f"v_add_f32 {v(mean)}, {v(mean)}, v8")
        e(f"v_add_f32 {v(rstd)}, {v(rstd)}, v9")
    e("v_lshrrev_b32 v8, 6, v0")
    e("v_lshlrev_b32 v8, 3, v8")
    e(f"v_lshl_add_u32 v8, {v(vr)}, 5, v8")
    e(f"ds_write_b64 v8, {v(mean, 2)} offset:{lds_off}")
    e("s_waitcnt lgkmcnt(0)")
    e("s_barrier")
    e(f"v_lshlrev_b32 v8, 5, {v(vr)}")
    e(f"ds_read_b128 v[12:15], v8 offset:{lds_off + 16}")
    e(f"ds_read_b128 v[8:11], v8 offset:{lds_off}")
    e("s_waitcnt lgkmcnt(0)")
    e("v_add_f32 v8, v8, v10")
    e("v_add_f32 v9, v9, v11")
    e("v_add_f32 v12, v12, v14")
    e("v_add_f32 v13, v13, v15")
    e(f"v_add_f32 {v(mean)}, v8, v12")
    e(f"v_add_f32 {v(rstd)}, v9, v13")
    e(f"v_mul_f32 {v(mean)}, {1.0 / 512!r}, {v(mean)}")
    e(f"v_mul_f32 {v(rstd)}, {1.0 / 512!r}, {v(rstd)}")
    e(f"v_fma_f32 {v(rstd)}, -{v(mean)}, {v(mean)}, {v(rstd)}")
    e(f"v_max_f32 {v(rstd)}, 0, {v(rstd)}")
    e(f"v_add_f32 {v(rstd)}, 0x3727c5ac, {v(rstd)}")
    e(f"v_rsq_f32 {v(rstd)}, {v(rstd)}")
    e("s_nop 0")
    e(f"v_mul_f32 {v(mean)}, {v(mean)}, {v(rstd)}")


def gen_pre():
    k = Kern("pre_kernel", vgpr=128, agpr=0, sgpr=80)
    e = k.e
    LDS_SC = 0
    LDS_RED = 2048
    LDS_PAR = LDS_RED + 8192
    LDS_ST = LDS_PAR + 4096
    XR, X, WA, ACC, SV = 96, 16, 48, 112, 120
    e(f"s_cmp_ge_u32 s2, {PRE_GRID}")
    e("s_cbranch_scc1 L_pre_end")
    k.stamp()
    e("s_load_dwordx2 s[4:5], s[0:1], 0")
    e("s_load_dwordx2 s[6:7], s[0:1], 64")
    e("s_load_dwordx4 s[8:11], s[0:1], 80")
    e("s_load_dwordx4 s[12:15], s[0:1], 104")
    e("s_load_dwordx4 s[60:63], s[0:1], 8")
    e("s_load_dwordx2 s[48:49], s[0:1], 24")
    e("v_and_b32 v1, 7, v0")
    e("v_lshrrev_b32 v2, 3, v0")
    e("v_and_b32 v3, 63, v0")
    e("v_lshrrev_b32 v4, 6, v0")
    e("v_and_b32 v80, 15, v0")
    e("v_lshrrev_b32 v81, 4, v0")
    e("v_readfirstlane_b32 s55, v4")
    e("s_lshl_b32 s40, s2, 14")
    e("v_lshlrev_b32 v5, 10, v80")
    e("v_lshl_add_u32 v5, v81, 4, v5")
    e("v_add_u32 v5, s40, v5")
    e("s_waitcnt lgkmcnt(0)")
    e("s_mov_b32 s30, s48")
    e("s_mov_b32 s31, s49")
    srd(k, 16, 8, 0, 1024)
    srd(k, 20, 10, 0, 512 * 6144)
    srd(k, 24, 4, 0, 2048 * 1024)
    srd(k, 32, 14, OFF_MOD, 16384 + 16384)
    srd(k, 36, 12, 0, 256)
    e("s_cmp_ge_u32 s2, 128")
    e("s_cbranch_scc1 L_pre_role3")
    e(f"s_cmp_ge_u32 s2, {NPROD}")
    e("s_cbranch_scc1 L_pre_role2")

    e("s_and_b32 s41, s2, 15")
    e("s_lshr_b32 s42, s2, 4")
    e("s_lshl_b32 s43, s42, 8")
    e("v_lshlrev_b32 v6, 1, v2")
    for i in range(4):
        e(f"buffer_load_ushort {v(SV + i)}, v6, s[16:19], s43 offen offset:{64 * i}")
    e("s_mov_b32 s44, 6144")
    e("v_mul_lo_u32 v7, v2, s44")
    e("v_lshl_add_u32 v7, v1, 4, v7")
    e("s_mul_i32 s45, s42, 128 * 6144".replace("128 * 6144", str(128 * 6144)))
    e("s_lshl_b32 s46, s41, 7")
    e("s_add_u32 s45, s45, s46")
    for i in range(4):
        e(f"buffer_load_dwordx4 {v(WA + 4 * i, 4)}, v7, s[20:23], s45 offen")
        e(f"s_add_u32 s45, s45, {32 * 6144}")
    for pc in range(4):
        e(f"buffer_load_dwordx4 {v(XR + 4 * pc, 4)}, v5, s[24:27], 0 offen offset:{256 * pc}")
    e("s_waitcnt vmcnt(8)")
    for i in range(4):
        e(f"v_lshlrev_b32 {v(SV + i)}, 16, {v(SV + i)}")
    silu_regs(k, SV, 4, SV + 4)
    for j in range(8):
        e(f"v_mov_b32 {v(ACC + j)}, 0")
    for i in range(4):
        e(f"s_waitcnt vmcnt({7 - i})")
        gemv_step(k, WA + 4 * i, ACC, SV + i)
    e("v_lshlrev_b32 v6, 8, v2")
    e("v_lshl_add_u32 v6, v1, 5, v6")
    e(f"ds_write_b128 v6, {v(ACC, 4)} offset:{LDS_RED}")
    e(f"ds_write_b128 v6, {v(ACC + 4, 4)} offset:{LDS_RED + 16}")
    e("s_waitcnt lgkmcnt(0)")
    e("s_barrier")
    e("s_cmp_lg_u32 s55, 0")
    e("s_cbranch_scc1 L_pre_join")
    e("v_lshlrev_b32 v6, 2, v3")
    for g in range(32):
        e(f"ds_read_b32 {v(WA + g)}, v6 offset:{LDS_RED + g * 256}")
    e("s_waitcnt lgkmcnt(0)")
    for g in range(16):
        e(f"v_add_f32 {v(WA + g)}, {v(WA + g)}, {v(WA + 16 + g)}")
    for step in (8, 4, 2, 1):
        for g in range(step):
            e(f"v_add_f32 {v(WA + g)}, {v(WA + g)}, {v(WA + step + g)}")
    e("s_lshl_b32 s45, s42, 12")
    e("s_lshl_b32 s46, s41, 8")
    e("s_add_u32 s45, s45, s46")
    e("s_add_u32 s45, s45, 16384")
    e(f"buffer_store_dword {v(WA)}, v6, s[32:35], s45 offen sc1")
    e("s_waitcnt vmcnt(0)")
    e("v_mov_b32 v6, 0")
    e("v_mov_b32 v7, 1")
    e("v_cmp_eq_u32 vcc, 0, v3")
    e("s_and_saveexec_b64 s[48:49], vcc")
    e("buffer_atomic_add v7, v6, s[36:39], 0 offen")
    e("s_mov_b64 exec, s[48:49]")
    e("s_branch L_pre_join2")

    k.label("L_pre_role2")
    for pc in range(4):
        e(f"buffer_load_dwordx4 {v(XR + 4 * pc, 4)}, v5, s[24:27], 0 offen offset:{256 * pc}")
    e("s_branch L_pre_join")
    k.label("L_pre_role3")
    e("s_sub_u32 s41, s2, 128")
    e("s_and_b32 s42, s41, 7")
    e("s_lshr_b32 s41, s41, 3")
    e("s_cmp_ge_u32 s41, 8")
    e("s_cselect_b32 s53, 1, 0")
    e("s_and_b32 s41, s41, 7")
    e("s_lshr_b32 s50, s41, 1")
    e("s_lshl_b32 s50, s50, 4")
    e("s_and_b32 s41, s41, 1")
    e("s_add_u32 s41, s41, s50")
    e("s_lshl_b32 s42, s42, 1")
    e("s_add_u32 s41, s41, s42")
    e("s_cmp_ge_u32 s41, 56")
    e("s_cselect_b32 s50, s53, 0")
    e("s_cmp_eq_u32 s50, 1")
    e("s_cbranch_scc1 L_pre_end")
    e("s_lshl_b32 s43, s41, 6")
    e("s_lshl_b32 s54, s41, 7")
    e("s_cmp_eq_u32 s53, 1")
    e("s_cselect_b32 s56, s6, s10")
    e("s_cselect_b32 s57, s7, s11")
    e(f"s_cselect_b32 s58, {512 * 3584}, s22")
    e("s_mov_b32 s59, 0x00020000")
    e("s_mov_b32 s42, 6144")
    e("s_cselect_b32 s42, 3584, s42")
    e("s_cselect_b32 s50, 0, 2048")
    e("s_add_u32 s43, s43, s50")
    e("s_cmp_eq_u32 s53, 1")
    e(f"s_cselect_b32 s50, {MOD_CS3}, 0")
    e("s_add_u32 s54, s54, s50")
    e("v_lshlrev_b32 v6, 2, v0")
    e("buffer_load_dword v6, v6, s[16:19], 0 offen")
    e("v_lshrrev_b32 v46, 2, v0")
    e("v_and_b32 v47, 3, v0")
    e("v_mul_lo_u32 v7, v46, s42")
    e("v_lshl_add_u32 v7, v47, 4, v7")
    e("s_lshl_b32 s45, s42, 6")
    for i in range(8):
        e(f"buffer_load_dwordx4 {v(WA + 4 * i, 4)}, v7, s[56:59], s43 offen")
        e("s_add_u32 s43, s43, s45")
    e("s_waitcnt vmcnt(8)")
    silu_to_lds(k, LDS_SC, ones_if="s53")
    e("s_waitcnt lgkmcnt(0)")
    e("s_barrier")
    e("v_lshlrev_b32 v6, 2, v46")
    for i in range(8):
        e(f"ds_read_b32 {v(X + i)}, v6 offset:{LDS_SC + i * 256}")
    for j in range(8):
        e(f"v_mov_b32 {v(ACC + j)}, 0")
    e("s_waitcnt lgkmcnt(0)")
    for i in range(8):
        e(f"s_waitcnt vmcnt({7 - i})")
        gemv_step(k, WA + 4 * i, ACC, X + i)
    e("v_lshlrev_b32 v6, 7, v46")
    e("v_lshl_add_u32 v6, v47, 5, v6")
    e(f"ds_write_b128 v6, {v(ACC, 4)} offset:{LDS_RED}")
    e(f"ds_write_b128 v6, {v(ACC + 4, 4)} offset:{LDS_RED + 16}")
    e("s_waitcnt lgkmcnt(0)")
    e("s_barrier")
    e("s_cmp_lg_u32 s55, 0")
    e("s_cbranch_scc1 L_pre_end")
    e("v_and_b32 v6, 31, v3")
    e("v_lshlrev_b32 v6, 2, v6")
    e("v_lshrrev_b32 v7, 5, v3")
    e("v_lshl_add_u32 v6, v7, 12, v6")
    for g in range(32):
        e(f"ds_read_b32 {v(WA + g)}, v6 offset:{LDS_RED + g * 128}")
    e("s_waitcnt lgkmcnt(0)")
    for g in range(16):
        e(f"v_add_f32 {v(WA + g)}, {v(WA + g)}, {v(WA + 16 + g)}")
    for step in (8, 4, 2, 1):
        for g in range(step):
            e(f"v_add_f32 {v(WA + g)}, {v(WA + g)}, {v(WA + step + g)}")
    e(f"v_mov_b32 {v(WA + 1)}, {v(WA)}")
    e("s_nop 1")
    e(f"v_permlane32_swap_b32 {v(WA)}, {v(WA + 1)}")
    e("s_nop 1")
    e(f"v_add_f32 {v(WA)}, {v(WA)}, {v(WA + 1)}")
    e("s_cmp_eq_u32 s53, 1")
    e("s_cbranch_scc1 L_pre_BC_store")
    round_bf16(k, WA, WA, WA + 1)
    e("s_lshr_b32 s50, s41, 4")
    e("s_cmp_eq_u32 s50, 2")
    e("s_cbranch_scc0 L_pre_BC_store")
    e(f"v_add_f32 {v(WA)}, 1.0, {v(WA)}")
    round_bf16(k, WA, WA, WA + 1)
    k.label("L_pre_BC_store")
    e("v_and_b32 v6, 31, v3")
    e("v_lshlrev_b32 v6, 2, v6")
    e(f"buffer_store_dword {v(WA)}, v6, s[32:35], s54 offen")
    e("s_branch L_pre_end")

    k.label("L_pre_join")
    e("s_waitcnt vmcnt(0)")
    k.label("L_pre_join2")
    k.stamp()
    for pc in range(4):
        for d in range(4):
            e(f"v_lshlrev_b32 {v(X + 8 * pc + 2 * d)}, 16, {v(XR + 4 * pc + d)}")
            e(f"v_and_b32 {v(X + 8 * pc + 2 * d + 1)}, 0xffff0000, {v(XR + 4 * pc + d)}")
    row_stats(k, X, 32, LDS_ST, 124, 125, 80, rows=16)
    k.stamp()
    e("s_cmp_lg_u32 s55, 1")
    e("s_cbranch_scc1 L_pre_polled")
    e(f"s_mov_b32 s50, {SPIN_LIMIT}")
    e("v_mov_b32 v6, 0")
    k.label("L_pre_poll")
    e("buffer_load_dword v7, v6, s[36:39], 0 offen sc1")
    e("s_waitcnt vmcnt(0)")
    e("v_readfirstlane_b32 s51, v7")
    e(f"s_cmp_ge_u32 s51, {NPROD}")
    e("s_cbranch_scc1 L_pre_polled")
    e("s_sleep 4")
    e("s_sub_u32 s50, s50, 1")
    e("s_cmp_lg_u32 s50, 0")
    e("s_cbranch_scc1 L_pre_poll")
    k.label("L_pre_polled")
    e("s_barrier")
    k.stamp()
    e("v_lshlrev_b32 v6, 4, v0")
    for kq in range(4):
        e(f"s_mov_b32 s50, {16384 + kq * 4096}")
        e(f"buffer_load_dwordx4 {v(WA + 4 * kq, 4)}, v6, s[32:35], s50 offen sc1")
    if ATTN_PF:
        e("s_and_b32 s42, s2, 7")
        e("s_lshr_b32 s43, s2, 3")
        e("s_lshl_b32 s43, s43, 2")
        e("s_add_u32 s43, s43, s55")
        e("s_lshr_b32 s50, s43, 4")
        e("s_lshl_b32 s50, s50, 3")
        e("s_add_u32 s50, s50, s42")
        e("s_and_b32 s43, s43, 15")
        e("s_lshl_b32 s51, s50, 8")
        e("s_add_u32 s64, s30, s51")
        e("s_addc_u32 s65, s31, 0")
        e(f"s_sub_u32 s66, {512 * 8192}, s51")
        e("s_mov_b32 s67, 0x00020000")
        e("v_lshrrev_b32 v8, 1, v3")
        e("v_and_b32 v9, 1, v3")
        e("v_lshlrev_b32 v8, 13, v8")
        e("v_lshl_add_u32 v8, v9, 7, v8")
        e("s_lshl_b32 s51, s43, 18")
        e("buffer_load_dword v126, v8, s[64:67], s51 offen")
        e("s_lshl_b32 s51, s50, 19")
        for base, dst, sh in ((60, 127, 5), (62, 123, 4)):
            e(f"v_lshlrev_b32 v9, {sh}, v3")
            e(f"s_lshl_b32 s52, s43, {sh + 6}")
            e(f"s_add_u32 s68, s{base}, s51")
            e(f"s_addc_u32 s69, s{base + 1}, 0")
            e("s_mov_b32 s70, 524288")
            e("s_mov_b32 s71, 0x00020000")
            e(f"buffer_load_dword v{dst}, v9, s[68:71], s52 offen")
    srd(k, 28, 14, OFF_H0, SZ_ACT)
    e(f"s_waitcnt vmcnt({3 if ATTN_PF else 0})")
    for q in range(4):
        e(f"v_add_f32 {v(WA + q)}, {v(WA + q)}, {v(WA + 4 + q)}")
        e(f"v_add_f32 {v(WA + 8 + q)}, {v(WA + 8 + q)}, {v(WA + 12 + q)}")
    for q in range(4):
        e(f"v_add_f32 {v(WA + q)}, {v(WA + q)}, {v(WA + 8 + q)}")
    for q in range(4):
        round_bf16(k, WA + q, WA + q, WA + 4 + q)
    for q in range(4):
        e(f"v_add_f32 {v(WA + 8 + q)}, 1.0, {v(WA + q)}")
        round_bf16(k, WA + 8 + q, WA + 8 + q, WA + 4 + q)
    e("v_cmp_le_u32 vcc, 128, v0")
    e("s_nop 1")
    for q in range(4):
        e(f"v_cndmask_b32 {v(WA + q)}, {v(WA + q)}, {v(WA + 8 + q)}, vcc")
    e(f"ds_write_b128 v6, {v(WA, 4)} offset:{LDS_PAR}")
    e("s_waitcnt lgkmcnt(0)")
    e("s_barrier")
    e("v_lshlrev_b32 v6, 5, v81")
    e("s_lshr_b32 s50, s2, 1")
    e("s_lshl_b32 s50, s50, 15")
    e("s_and_b32 s51, s2, 1")
    e("s_lshl_b32 s51, s51, 8")
    e("s_add_u32 s50, s50, s51")
    e("v_lshlrev_b32 v7, 9, v81")
    e("v_lshl_add_u32 v7, v80, 4, v7")
    e("v_add_u32 v7, s50, v7")
    e(f"s_mov_b32 s51, {f32hex(ATTN_SCALE)}")
    for i in range(4):
        b = WA + 16 * (i & 1)
        for hh in range(2):
            e(f"ds_read_b128 {v(b + 4 * hh, 4)}, v6 offset:{LDS_PAR + 512 * i + 16 * hh}")
            e(f"ds_read_b128 {v(b + 8 + 4 * hh, 4)}, v6 offset:{LDS_PAR + 2048 + 512 * i + 16 * hh}")
        x = X + 8 * i
        for q in range(8):
            e(f"v_fma_f32 {v(x + q)}, {v(x + q)}, v125, -v124")
        e("s_waitcnt lgkmcnt(0)")
        for q in range(8):
            e(f"v_fma_f32 {v(x + q)}, {v(x + q)}, {v(b + 8 + q)}, {v(b + q)}")
        for q in range(8):
            e(f"v_mul_f32 {v(x + q)}, s51, {v(x + q)}")
        for d in range(4):
            e(f"v_cvt_pk_bf16_f32 {v(XR + 4 * i + d)}, {v(x + 2 * d)}, {v(x + 2 * d + 1)}")
        e(f"s_mov_b32 s50, {8192 * i}")
        e(f"buffer_store_dwordx4 {v(XR + 4 * i, 4)}, v7, s[28:31], s50 offen")
    k.stamp()
    if Kern.STAMPS:
        e("s_waitcnt vmcnt(0)")
    k.stamp()
    k.stamp_flush(0)
    k.label("L_pre_end")
    e("s_endpgm")
    return k


def silu_to_lds(k, lds_off, ones_if=None):
    k.e("v_lshlrev_b32 v36, 16, v6")
    k.e("v_and_b32 v37, 0xffff0000, v6")
    k.e(f"v_mul_f32 v38, {f32hex(-LOG2E)}, v36")
    k.e(f"v_mul_f32 v39, {f32hex(-LOG2E)}, v37")
    k.e("v_exp_f32 v38, v38")
    k.e("v_exp_f32 v39, v39")
    k.e("s_nop 0")
    k.e("v_add_f32 v38, 1.0, v38")
    k.e("v_add_f32 v39, 1.0, v39")
    k.e("v_rcp_f32 v38, v38")
    k.e("v_rcp_f32 v39, v39")
    k.e("s_nop 0")
    k.e("v_mul_f32 v36, v36, v38")
    k.e("v_mul_f32 v37, v37, v39")
    k.e("v_cvt_pk_bf16_f32 v38, v36, v37")
    k.e("v_lshlrev_b32 v36, 16, v38")
    k.e("v_and_b32 v37, 0xffff0000, v38")
    if ones_if:
        k.e(f"s_cmp_eq_u32 {ones_if}, 1")
        k.e("s_cbranch_scc0 L_pre_silu_keep")
        k.e("v_mov_b32 v36, 1.0")
        k.e("v_mov_b32 v37, 1.0")
        k.label("L_pre_silu_keep")
    k.e("v_lshlrev_b32 v38, 3, v0")
    k.e(f"ds_write_b64 v38, v[36:37] offset:{lds_off}")


def gemv_step(k, w, acc, sv):
    for d in range(4):
        k.e(f"v_lshlrev_b32 v8, 16, {v(w + d)}")
        k.e(f"v_and_b32 v5, 0xffff0000, {v(w + d)}")
        k.e(f"v_fmac_f32 {v(acc + 2 * d)}, v8, {v(sv)}")
        k.e(f"v_fmac_f32 {v(acc + 2 * d + 1)}, v5, {v(sv)}")


PRE_LDS = 2048 + 8192 + 4096 + 512
```

```python
from asmlib import *
from layout import *
from k_pre import srd, round_bf16

S_W, S_A = 8, 12
S_E0, S_E1, S_E2, S_E3 = 16, 20, 24, 28
S_WAVE, S_WI, S_WJ = 32, 33, 34
S_WSO, S_ASO = 35, 36
S_WOFF = 37
S_M0, S_N0, S_KS = 38, 39, 40
S_T = 41

V_LANE = 1
V_WD = 2
V_AD = 6
V_RA = 10
V_RB = 14
V_X = 16
V_ACC = 32
V_FA = 96
V_FB = 160
SLOT = 32768
PREFETCH = True


def mf(d, A, B, C):
    return f"v_mfma_f32_32x32x16_bf16 {d}, {A}, {B}, {C}"


class Gemm:
    def __init__(self, k, TM, TN, K, KS, RS, KCA, shifted=False):
        self.k, self.TM, self.TN, self.K, self.KS, self.RS, self.KCA = k, TM, TN, K, KS, RS, KCA
        self.shifted = shifted
        self.MQ = TM // 64
        self.NB = TN // 64
        self.kps = KS // 16
        self.nst = K // KS
        self.NS = min(4, self.nst)
        self.after_last = []
        self.pf_done = False
        assert KS * TN * 2 == 16384 and (TM // 32) * self.kps * 1024 == 16384

    def setup(self):
        k, e = self.k, self.k.e
        L = V_LANE
        e(f"s_lshl_b32 {s(S_WOFF)}, {s(S_WAVE)}, 12")
        if self.TN == 128:
            e(f"v_lshrrev_b32 v16, 4, {v(L)}")
            e(f"v_and_b32 v17, 15, {v(L)}")
            e("v_lshlrev_b32 v18, 2, v16")
            e("v_xor_b32 v18, v18, v17")
            rows_w, rows_i = 16, 4
        else:
            e(f"v_lshrrev_b32 v16, 3, {v(L)}")
            e(f"v_and_b32 v17, 7, {v(L)}")
            e("v_lshrrev_b32 v18, 1, v16")
            e("v_and_b32 v18, 1, v18")
            e("v_lshlrev_b32 v18, 2, v18")
            e("v_xor_b32 v18, v18, v17")
            rows_w, rows_i = 32, 8
        e("v_lshlrev_b32 v18, 4, v18")
        e(f"s_mov_b32 {s(S_T)}, {self.RS}")
        e(f"v_mul_lo_u32 v19, v16, {s(S_T)}")
        e("v_add_u32 v18, v18, v19")
        e(f"s_mul_i32 {s(S_T)}, {s(S_WAVE)}, {rows_w * self.RS}")
        e(f"v_add_u32 v18, {s(S_T)}, v18")
        for i in range(4):
            e(f"v_add_u32 {v(V_WD + i)}, {i * (rows_i * self.RS - 1024)}, v18")
        if self.TM == 128:
            e(f"s_mul_i32 {s(S_T)}, {s(S_WAVE)}, {self.KCA * 1024}")
        else:
            e(f"s_lshr_b32 {s(S_T)}, {s(S_WAVE)}, 1")
            e(f"s_mul_i32 {s(S_T)}, {s(S_T)}, {self.KCA * 1024}")
            e(f"s_and_b32 {s(S_T + 1)}, {s(S_WAVE)}, 1")
            e(f"s_lshl_b32 {s(S_T + 1)}, {s(S_T + 1)}, 12")
            e(f"s_add_u32 {s(S_T)}, {s(S_T)}, {s(S_T + 1)}")
        if not self.shifted:
            e(f"v_lshlrev_b32 v16, 4, {v(L)}")
            e(f"v_add_u32 {v(V_AD)}, {s(S_T)}, v16")
        else:
            e(f"s_lshr_b32 {s(S_T + 1)}, {s(S_M0)}, 5")
            e(f"s_mul_i32 {s(S_T + 1)}, {s(S_T + 1)}, {self.KCA * 1024}")
            e(f"s_add_u32 {s(S_T)}, {s(S_T)}, {s(S_T + 1)}")
            e(f"v_and_b32 v16, 31, {v(L)}")
            e(f"v_and_b32 v17, 32, {v(L)}")
            for g, sh in enumerate((-1, 1, -2, 2)):
                e(f"v_add_u32 v18, {sh}, v16")
                e("v_ashrrev_i32 v19, 5, v18")
                e("v_and_b32 v18, 31, v18")
                e("v_add_u32 v18, v18, v17")
                e("v_lshlrev_b32 v18, 4, v18")
                e(f"s_mov_b32 {s(S_T + 1)}, {self.KCA * 1024}")
                e(f"v_mul_lo_u32 v19, v19, {s(S_T + 1)}")
                e("v_add_u32 v18, v18, v19")
                e(f"v_add_u32 {v(V_AD + g)}, {s(S_T)}, v18")
        e(f"v_and_b32 v16, 15, {v(L)}")
        e("v_lshrrev_b32 v16, 2, v16")
        e(f"v_and_b32 v17, 3, {v(L)}")
        e(f"v_lshrrev_b32 v18, 4, {v(L)}")
        e("v_and_b32 v18, 1, v18")
        e(f"v_lshrrev_b32 v19, 5, {v(L)}")
        e("v_and_b32 v20, 1, v17")
        e("v_lshl_add_u32 v20, v18, 1, v20")
        e("v_lshlrev_b32 v20, 4, v20")
        e("v_lshrrev_b32 v17, 1, v17")
        e("v_lshl_add_u32 v20, v17, 3, v20")
        rowb = self.TN * 2
        sh = 8 if rowb == 256 else 7
        e(f"v_lshl_add_u32 v20, v16, {sh}, v20")
        e(f"v_lshl_add_u32 v20, v19, {sh + 3}, v20")
        if self.TN == 64:
            e("v_lshrrev_b32 v16, 1, v16")
        for nb in range(self.NB):
            e(f"s_mul_i32 {s(S_T)}, {s(S_WJ)}, {self.NB}")
            e(f"s_add_u32 {s(S_T)}, {s(S_T)}, {nb}")
            e(f"v_xor_b32 v21, {s(S_T)}, v16")
            e(f"v_lshl_add_u32 {v(V_RA + nb)}, v21, 6, v20")
            e(f"v_add_u32 {v(V_RA + 2 + nb)}, 65536, {v(V_RA + nb)}")
        e(f"s_mul_i32 {s(S_T)}, {s(S_WI)}, {self.MQ * self.kps * 1024}")
        e(f"s_add_u32 {s(S_T)}, {s(S_T)}, 16384")
        e(f"v_lshlrev_b32 v16, 4, {v(L)}")
        e(f"v_add_u32 {v(V_RB)}, {s(S_T)}, v16")
        e(f"v_add_u32 {v(V_RB + 1)}, 65536, {v(V_RB)}")

    def dma(self, st):
        slot = (st % self.NS) * SLOT
        items = [f"s_add_u32 m0, {s(S_WOFF)}, {slot}"]
        for i in range(4):
            items.append((f"buffer_load_dwordx4 {v(V_WD + i)}, {s(S_W, 4)}, {s(S_WSO)} offen offset:{i * 1024} lds", f"st{st}"))
        items.append(f"s_add_u32 {s(S_WSO)}, {s(S_WSO)}, {self.KS * self.RS}")
        items.append(f"s_add_u32 m0, {s(S_WOFF)}, {slot + 16384}")
        ad = V_AD + (st if self.shifted else 0)
        for i in range(4):
            items.append((f"buffer_load_dwordx4 {v(ad)}, {s(S_A, 4)}, {s(S_ASO)} offen offset:{i * 1024} lds", f"st{st}"))
        items.append(f"s_add_u32 {s(S_ASO)}, {s(S_ASO)}, {self.kps * 1024}")
        return items

    def fa(self, buf, kl, nb):
        return V_FA + buf * 32 + (kl * self.NB + nb) * 4

    def fb(self, buf, kl, qb):
        return V_FB + buf * 32 + (kl * self.MQ + qb) * 4

    def reads(self, st):
        sl = st % self.NS
        hi = sl >= 2
        base = (sl & 1) * SLOT
        rowb = self.TN * 2
        out = []
        for kl in range(self.kps):
            for qb in range(self.MQ):
                out.append(f"ds_read_b128 {v(self.fb(st & 1, kl, qb), 4)}, {v(V_RB + hi)} offset:{base + (qb * self.kps + kl) * 1024}")
            for nb in range(self.NB):
                for p in range(2):
                    out.append(f"ds_read_b64_tr_b16 {v(self.fa(st & 1, kl, nb) + 2 * p, 2)}, {v(V_RA + 2 * hi + nb)} offset:{base + (16 * kl + 4 * p) * rowb}")
        return out

    def acc(self, nb, qb):
        return V_ACC + (nb * self.MQ + qb) * 16

    def emit_items(self, items):
        for it in items:
            if isinstance(it, tuple):
                self.k.vmem(it[0], it[1])
            else:
                self.k.e(it)

    LEAD = 2

    def prologue_loads(self):
        self.issued = min(self.LEAD, self.nst)
        for st in range(self.issued):
            self.emit_items(self.dma(st))

    def main(self, extra_loads=None):
        k, e = self.k, self.k.e
        e(k.vm_wait(["st0"]))
        e("s_barrier")
        self.emit_items(self.reads(0))
        for st in range(self.nst):
            mfs = []
            for kl in range(self.kps):
                for nb in range(self.NB):
                    for qb in range(self.MQ):
                        d = v(self.acc(nb, qb), 16)
                        first = st == 0 and kl == 0
                        mfs.append(mf(d, v(self.fa(st & 1, kl, nb), 4), v(self.fb(st & 1, kl, qb), 4), "0" if first else d))
            e("s_waitcnt lgkmcnt(0)")
            fill = []
            if st + 1 < self.nst:
                e(k.vm_wait([f"st{st + 1}"]))
                e("s_barrier")
                fill += self.reads(st + 1)
            d = []
            lim = min(self.nst, st + self.NS + (1 if st + 1 < self.nst else 0))
            while self.issued < lim:
                d += self.dma(self.issued)
                self.issued += 1
            if self.issued == self.nst and self.after_last and not self.pf_done:
                d += self.after_last
                self.pf_done = True
            if d:
                fill = merge(fill, d)
            if extra_loads and st == max(0, self.nst - 2):
                fill = merge(fill, extra_loads)
            n = len(mfs)
            gaps = [[] for _ in range(n)]
            for i, x in enumerate(fill):
                gaps[min(n - 1, i * max(1, n - 2) // max(1, len(fill)))].append(x)
            for g in range(n):
                e(mfs[g])
                self.emit_items(gaps[g])


def merge(a_, b_):
    out = []
    na, nb = len(a_), len(b_)
    ia = ib = 0
    while ia < na or ib < nb:
        if ib >= nb or (ia < na and ia * nb <= ib * na):
            out.append(a_[ia]); ia += 1
        else:
            out.append(b_[ib]); ib += 1
    return out


S_PF = 56
V_PFO = 28


def prefetch_items(k, ptr, nbytes, n_instr):
    e = k.e
    e(f"s_mov_b32 {s(S_PF)}, {s(ptr)}")
    e(f"s_mov_b32 {s(S_PF + 1)}, {s(ptr + 1)}")
    e(f"s_mov_b32 {s(S_PF + 2)}, {nbytes}")
    e(f"s_mov_b32 {s(S_PF + 3)}, 0x00020000")
    e("s_lshr_b32 s60, s2, 3")
    e("s_lshl_b32 s60, s60, 2")
    e(f"s_add_u32 s60, s60, {s(S_WAVE)}")
    e(f"s_mul_i32 s60, s60, {8192 * n_instr}")
    e(f"v_lshlrev_b32 {v(V_PFO)}, 7, {v(V_LANE)}")
    e(f"v_add_u32 {v(V_PFO)}, s60, {v(V_PFO)}")
    items = []
    for i in range(n_instr):
        items.append(f"s_mov_b32 s61, {8192 * i}")
        items.append((f"buffer_load_dword {v(V_PFO + 1 + i)}, {v(V_PFO)}, {s(S_PF, 4)}, s61 offen", "pf"))
    return items


def header(k, nwg, loads):
    e = k.e
    e(f"s_cmp_ge_u32 s2, {nwg}")
    e(f"s_cbranch_scc1 L_{k.name}_end")
    for reg, off, n in loads:
        e(f"s_load_dwordx{n} {s(reg, n)}, s[0:1], {off}" if n > 1 else "")
    e(f"v_and_b32 {v(V_LANE)}, 63, v0")
    e("v_lshrrev_b32 v2, 6, v0")
    e("s_nop 0")
    e(f"v_readfirstlane_b32 {s(S_WAVE)}, v2")
    e(f"s_lshr_b32 {s(S_WI)}, {s(S_WAVE)}, 1")
    e(f"s_and_b32 {s(S_WJ)}, {s(S_WAVE)}, 1")


def finish(k, slot):
    k.stamp()
    if Kern.STAMPS:
        k.e("s_waitcnt vmcnt(0)")
    k.stamp()
    k.stamp_flush(slot)
    k.label(f"L_{k.name}_end")
    k.e("s_endpgm")


def out_frag_offset(k, g, dst_v, kc_out, tmp):
    e = k.e
    e(f"s_lshr_b32 {s(tmp)}, {s(S_M0)}, 5")
    e(f"s_mul_i32 {s(tmp + 1)}, {s(S_WI)}, {g.MQ}")
    e(f"s_add_u32 {s(tmp)}, {s(tmp)}, {s(tmp + 1)}")
    e(f"s_mul_i32 {s(tmp)}, {s(tmp)}, {kc_out}")
    e(f"s_lshr_b32 {s(tmp + 1)}, {s(S_N0)}, 4")
    e(f"s_add_u32 {s(tmp)}, {s(tmp)}, {s(tmp + 1)}")
    e(f"s_mul_i32 {s(tmp + 1)}, {s(S_WJ)}, {2 * g.NB}")
    e(f"s_add_u32 {s(tmp)}, {s(tmp)}, {s(tmp + 1)}")
    e(f"s_lshl_b32 {s(tmp)}, {s(tmp)}, 10")
    e(f"v_lshlrev_b32 {v(dst_v)}, 4, {v(V_LANE)}")
    e(f"v_add_u32 {v(dst_v)}, {s(tmp)}, {v(dst_v)}")


def pack8(k, dst, src):
    for m in range(4):
        k.e(f"v_cvt_pk_bf16_f32 {v(dst + m)}, {v(src + 2 * m)}, {v(src + 2 * m + 1)}")


def unpack8(k, dst, src):
    for m in range(4):
        k.e(f"v_lshlrev_b32 {v(dst + 2 * m)}, 16, {v(src + m)}")
        k.e(f"v_and_b32 {v(dst + 2 * m + 1)}, 0xffff0000, {v(src + m)}")


GELU_C1 = -2.0 * LOG2E * math.sqrt(2.0 / math.pi)
GELU_C2 = GELU_C1 * 0.044715


def gelu_block(k, x, n, t, sc1, sc2):
    e = k.e
    for i in range(n):
        e(f"v_mul_f32 {v(t + i)}, {v(x + i)}, {v(x + i)}")
    for i in range(n):
        e(f"v_fma_f32 {v(t + i)}, {v(t + i)}, {s(sc2)}, {v(V_X + 15)}")
    for i in range(n):
        e(f"v_mul_f32 {v(t + i)}, {v(t + i)}, {v(x + i)}")
    for i in range(n):
        e(f"v_exp_f32 {v(t + i)}, {v(t + i)}")
    for i in range(n):
        e(f"v_add_f32 {v(t + i)}, 1.0, {v(t + i)}")
    for i in range(n):
        e(f"v_rcp_f32 {v(t + i)}, {v(t + i)}")
    for i in range(n):
        e(f"v_mul_f32 {v(x + i)}, {v(x + i)}, {v(t + i)}")


def round8(k, x, t):
    pack8(k, t, x)
    unpack8(k, x, t)


def gen_t1():
    k = Kern("oproj_kernel", vgpr=224, agpr=0, sgpr=64)
    e = k.e
    header(k, 256, [(44, 32, 2), (46, 112, 2), (54, 48, 2)])
    k.stamp()
    e("s_and_b32 s48, s2, 7")
    e("s_lshr_b32 s49, s2, 3")
    e(f"s_and_b32 {s(S_KS)}, s48, 3")
    e("s_lshr_b32 s48, s48, 2")
    e("s_lshl_b32 s48, s48, 3")
    e("s_lshr_b32 s50, s49, 2")
    e("s_add_u32 s48, s48, s50")
    e(f"s_lshl_b32 {s(S_M0)}, s48, 7")
    e("s_and_b32 s49, s49, 3")
    e(f"s_lshl_b32 {s(S_N0)}, s49, 7")
    e("s_waitcnt lgkmcnt(0)")
    srd(k, S_W, 44, 0, 4096 * 1024)
    srd(k, S_A, 46, OFF_O, SZ_O)
    e(f"s_lshl_b32 s48, {s(S_KS)}, 21")
    srd(k, S_E0, 46, OFF_PART, SZ_ACT, add_sgpr=48)
    g = Gemm(k, 128, 128, 1024, 64, 1024, 256)
    g.setup()
    e(f"s_lshl_b32 {s(S_WSO)}, {s(S_KS)}, 20")
    e(f"s_lshl_b32 s48, {s(S_N0)}, 1")
    e(f"s_add_u32 {s(S_WSO)}, {s(S_WSO)}, s48")
    e(f"s_lshl_b32 {s(S_ASO)}, {s(S_M0)}, 13")
    e(f"s_lshl_b32 s48, {s(S_KS)}, 16")
    e(f"s_add_u32 {s(S_ASO)}, {s(S_ASO)}, s48")
    g.prologue_loads()
    if PREFETCH:
        g.after_last = prefetch_items(k, 54, 524288, 1)
    out_frag_offset(k, g, V_X, 32, 48)
    k.stamp()
    g.main()
    k.stamp()
    e("s_nop 11")
    for qb in range(2):
        for nb in range(2):
            for kap in range(2):
                t = V_FA + ((qb * 4 + nb * 2 + kap) % 8) * 4
                pack8(k, t, g.acc(nb, qb) + 8 * kap)
                e(f"s_mov_b32 s48, {qb * 32768}")
                e(f"buffer_store_dwordx4 {v(t, 4)}, {v(V_X)}, {s(S_E0, 4)}, s48 offen offset:{(nb * 2 + kap) * 1024}")
    finish(k, 2)
    return k


def gen_row():
    k = Kern("row_kernel", vgpr=128, agpr=0, sgpr=64)
    e = k.e
    e("s_cmp_ge_u32 s2, 256")
    e("s_cbranch_scc1 L_row_kernel_end")
    k.stamp()
    e("s_load_dwordx2 s[44:45], s[0:1], 0")
    e("s_load_dwordx2 s[46:47], s[0:1], 112")
    e("v_and_b32 v1, 7, v0")
    e("v_lshrrev_b32 v2, 3, v0")
    e("s_waitcnt lgkmcnt(0)")
    srd(k, 8, 44, 0, SZ_ACT)
    srd(k, 12, 46, OFF_PART, 4 * SZ_ACT)
    srd(k, 16, 46, OFF_MOD, 16384)
    srd(k, 20, 46, OFF_X2, SZ_ACT)
    srd(k, 24, 46, OFF_H, SZ_ACT)
    srd(k, 28, 46, OFF_HN, SZ_ACT)
    e("s_lshr_b32 s48, s2, 2")
    e("s_lshl_b32 s48, s48, 15")
    e("s_and_b32 s49, s2, 3")
    e("s_lshl_b32 s49, s49, 7")
    e("s_add_u32 s48, s48, s49")
    e("v_lshlrev_b32 v3, 9, v2")
    e("v_lshl_add_u32 v3, v1, 4, v3")
    e("v_add_u32 v3, s48, v3")
    e("v_add_u32 v4, 16384, v3")
    e("s_lshl_b32 s48, s2, 13")
    e("v_lshlrev_b32 v5, 10, v1")
    e("v_lshl_add_u32 v5, v2, 4, v5")
    e("v_add_u32 v5, s48, v5")
    e("v_lshlrev_b32 v6, 5, v2")
    PART, XR, PAR = 16, 48, 56
    for pc in range(2):
        for ks in range(4):
            e(f"s_mov_b32 s48, {ks * SZ_ACT}")
            e(f"buffer_load_dwordx4 {v(PART + (pc * 4 + ks) * 4, 4)}, {v(3 + pc)}, s[12:15], s48 offen")
        e(f"buffer_load_dwordx4 {v(XR + 4 * pc, 4)}, v5, s[8:11], 0 offen offset:{512 * pc}")
    for pc in range(2):
        for pi, off in enumerate((MOD_GA, MOD_C1B, MOD_SB)):
            for hh in range(2):
                e(f"s_mov_b32 s48, {off + 1024 * pc}")
                e(f"buffer_load_dwordx4 {v(PAR + (pc * 3 + pi) * 8 + 4 * hh, 4)}, v6, s[16:19], s48 offen offset:{16 * hh}")
    X2 = 104
    T = 8
    e("s_waitcnt vmcnt(12)")
    for pc in range(2):
        acc = X2 + 8 * pc
        unpack8(k, acc, PART + (pc * 4) * 4)
        for ks in range(1, 4):
            unpack8(k, T, PART + (pc * 4 + ks) * 4)
            for q in range(8):
                e(f"v_add_f32 {v(acc + q)}, {v(acc + q)}, {v(T + q)}")
        round8(k, acc, T)
    e("s_waitcnt vmcnt(0)")
    for pc in range(2):
        acc = X2 + 8 * pc
        ga = PAR + (pc * 3) * 8
        for q in range(8):
            e(f"v_mul_f32 {v(acc + q)}, {v(ga + q)}, {v(acc + q)}")
        round8(k, acc, T)
        unpack8(k, T, XR + 4 * pc)
        for q in range(8):
            e(f"v_add_f32 {v(acc + q)}, {v(acc + q)}, {v(T + q)}")
        pack8(k, PART + 4 * pc, acc)
        unpack8(k, acc, PART + 4 * pc)
        e(f"buffer_store_dwordx4 {v(PART + 4 * pc, 4)}, {v(3 + pc)}, s[20:23], 0 offen")

    def row_stats(lds_off, mean, rstd):
        e(f"v_mov_b32 {v(mean)}, 0")
        e(f"v_mov_b32 {v(rstd)}, 0")
        for q in range(16):
            e(f"v_add_f32 {v(mean)}, {v(mean)}, {v(X2 + q)}")
            e(f"v_fmac_f32 {v(rstd)}, {v(X2 + q)}, {v(X2 + q)}")
        e("v_lshlrev_b32 v8, 8, v1")
        e("v_lshl_add_u32 v8, v2, 3, v8")
        e(f"ds_write_b64 v8, {v(mean, 2)} offset:{lds_off}")
        e("s_waitcnt lgkmcnt(0)")
        e("s_barrier")
        e("v_and_b32 v9, 7, v2")
        e("v_lshlrev_b32 v9, 5, v9")
        e("v_lshl_add_u32 v9, v1, 8, v9")
        e(f"ds_read_b128 v[8:11], v9 offset:{lds_off}")
        e(f"v_and_b32 v12, 7, v2")
        e("v_lshlrev_b32 v12, 5, v12")
        e("v_lshl_add_u32 v12, v1, 8, v12")
        e(f"ds_read_b128 v[12:15], v12 offset:{lds_off + 16}")
        e("s_waitcnt lgkmcnt(0)")
        e("v_add_f32 v8, v8, v10")
        e("v_add_f32 v9, v9, v11")
        e("v_add_f32 v12, v12, v14")
        e("v_add_f32 v13, v13, v15")
        e(f"v_add_f32 {v(mean)}, v8, v12")
        e(f"v_add_f32 {v(rstd)}, v9, v13")
        for off in (0x201F, 0x401F):
            e(f"ds_swizzle_b32 v8, {v(mean)} offset:{off}")
            e(f"ds_swizzle_b32 v9, {v(rstd)} offset:{off}")
            e("s_waitcnt lgkmcnt(0)")
            e(f"v_add_f32 {v(mean)}, {v(mean)}, v8")
            e(f"v_add_f32 {v(rstd)}, {v(rstd)}, v9")
        e(f"v_mov_b32 v8, {v(mean)}")
        e(f"v_mov_b32 v9, {v(rstd)}")
        e("s_nop 1")
        e(f"v_permlane32_swap_b32 {v(mean)}, v8")
        e(f"v_permlane32_swap_b32 {v(rstd)}, v9")
        e("s_nop 1")
        e(f"v_add_f32 {v(mean)}, {v(mean)}, v8")
        e(f"v_add_f32 {v(rstd)}, {v(rstd)}, v9")
        e(f"v_mul_f32 {v(mean)}, {1.0 / 512!r}, {v(mean)}")
        e(f"v_mul_f32 {v(rstd)}, {1.0 / 512!r}, {v(rstd)}")
        e(f"v_fma_f32 {v(rstd)}, -{v(mean)}, {v(mean)}, {v(rstd)}")
        e(f"v_max_f32 {v(rstd)}, 0, {v(rstd)}")
        e(f"v_add_f32 {v(rstd)}, 0x3727c5ac, {v(rstd)}")
        e(f"v_rsq_f32 {v(rstd)}, {v(rstd)}")
        e("s_nop 0")
        e(f"v_mul_f32 {v(mean)}, {v(mean)}, {v(rstd)}")

    row_stats(0, 120, 121)
    for pc in range(2):
        acc = X2 + 8 * pc
        c1, sb = PAR + (pc * 3 + 1) * 8, PAR + (pc * 3 + 2) * 8
        for q in range(8):
            e(f"v_fma_f32 {v(acc + q)}, {v(acc + q)}, v121, -v120")
        round8(k, acc, T)
        for q in range(8):
            e(f"v_mul_f32 {v(acc + q)}, {v(acc + q)}, {v(c1 + q)}")
        round8(k, acc, T)
        for q in range(8):
            e(f"v_add_f32 {v(acc + q)}, {v(acc + q)}, {v(sb + q)}")
        pack8(k, PART + 8 + 4 * pc, acc)
        unpack8(k, acc, PART + 8 + 4 * pc)
        e(f"buffer_store_dwordx4 {v(PART + 8 + 4 * pc, 4)}, {v(3 + pc)}, s[24:27], 0 offen")
    row_stats(2048, 122, 123)
    for pc in range(2):
        acc = X2 + 8 * pc
        for q in range(8):
            e(f"v_fma_f32 {v(acc + q)}, {v(acc + q)}, v123, -v122")
        pack8(k, PART + 16 + 4 * pc, acc)
        e(f"buffer_store_dwordx4 {v(PART + 16 + 4 * pc, 4)}, {v(3 + pc)}, s[28:31], 0 offen")
    finish(k, 3)
    return k


def tile64_map(k):
    e = k.e
    e("s_and_b32 s48, s2, 7")
    e("s_lshr_b32 s49, s2, 3")
    e("s_lshl_b32 s48, s48, 2")
    e("s_lshr_b32 s50, s49, 3")
    e("s_add_u32 s48, s48, s50")
    e(f"s_lshl_b32 {s(S_M0)}, s48, 6")
    e("s_and_b32 s49, s49, 7")
    e(f"s_lshl_b32 {s(S_N0)}, s49, 6")


def gen_t2():
    k = Kern("mix1_kernel", vgpr=224, agpr=0, sgpr=64)
    e = k.e
    header(k, 256, [(44, 48, 2), (46, 112, 2), (54, 56, 2)])
    k.stamp()
    tile64_map(k)
    e("s_waitcnt lgkmcnt(0)")
    srd(k, S_W, 44, 0, 512 * 1024)
    srd(k, S_A, 46, OFF_HN, SZ_ACT)
    srd(k, S_E0, 46, OFF_H1, SZ_ACT)
    g = Gemm(k, 64, 64, 512, 128, 1024, 32)
    g.setup()
    e(f"s_lshl_b32 {s(S_WSO)}, {s(S_N0)}, 1")
    e(f"s_lshl_b32 {s(S_ASO)}, {s(S_M0)}, 10")
    g.prologue_loads()
    if PREFETCH:
        g.after_last = prefetch_items(k, 54, 524288, 1)
    out_frag_offset(k, g, V_X, 32, 48)
    e(f"s_mov_b32 s50, {f32hex(GELU_C2)}")
    e(f"v_mov_b32 {v(V_X + 15)}, {f32hex(GELU_C1)}")
    k.stamp()
    g.main()
    k.stamp()
    e("s_nop 11")
    acc = g.acc(0, 0)
    for kap in range(2):
        round8(k, acc + 8 * kap, V_FA)
    gelu_block(k, acc, 16, V_FB, None, 50)
    for kap in range(2):
        pack8(k, V_FA + 4 * kap, acc + 8 * kap)
        e(f"buffer_store_dwordx4 {v(V_FA + 4 * kap, 4)}, {v(V_X)}, {s(S_E0, 4)}, 0 offen offset:{kap * 1024}")
    finish(k, 4)
    return k


def gen_t3():
    k = Kern("mix2_kernel", vgpr=224, agpr=0, sgpr=64)
    e = k.e
    header(k, 256, [(44, 56, 2), (46, 112, 2), (54, 64, 2)])
    k.stamp()
    tile64_map(k)
    e("s_waitcnt lgkmcnt(0)")
    srd(k, S_W, 44, 0, 512 * 1024)
    srd(k, S_A, 46, OFF_H1, SZ_ACT)
    srd(k, S_E0, 46, OFF_X1, SZ_ACT)
    srd(k, S_E1, 46, OFF_H, SZ_ACT)
    srd(k, S_E2, 46, OFF_ST, SZ_ST)
    g = Gemm(k, 64, 64, 512, 128, 1024, 32, shifted=True)
    g.setup()
    e(f"s_lshl_b32 {s(S_WSO)}, {s(S_N0)}, 1")
    e(f"s_mov_b32 {s(S_ASO)}, 0")
    g.prologue_loads()
    if PREFETCH:
        g.after_last = prefetch_items(k, 54, 1835008, 2)
    out_frag_offset(k, g, V_X, 32, 48)
    HR = V_X + 4
    for kap in range(2):
        k.vmem(f"buffer_load_dwordx4 {v(HR + 4 * kap, 4)}, {v(V_X)}, {s(S_E1, 4)}, 0 offen offset:{kap * 1024}", "hres")
    e(f"v_and_b32 {v(V_X + 1)}, 31, {v(V_LANE)}")
    e(f"s_lshl_b32 s48, {s(S_WI)}, 5")
    e(f"s_add_u32 s48, s48, {s(S_M0)}")
    e(f"v_add_u32 {v(V_X + 1)}, s48, {v(V_X + 1)}")
    e(f"v_lshlrev_b32 {v(V_X + 1)}, 7, {v(V_X + 1)}")
    e(f"s_lshr_b32 s48, {s(S_N0)}, 5")
    e(f"s_add_u32 s48, s48, {s(S_WJ)}")
    e("s_lshl_b32 s48, s48, 3")
    e(f"v_add_u32 {v(V_X + 1)}, s48, {v(V_X + 1)}")
    k.stamp()
    g.main()
    k.stamp()
    e("s_nop 11")
    e(k.vm_wait(["hres"]))
    acc = g.acc(0, 0)
    T = V_FB
    for kap in range(2):
        round8(k, acc + 8 * kap, V_FA)
        unpack8(k, T, HR + 4 * kap)
        for q in range(8):
            e(f"v_add_f32 {v(acc + 8 * kap + q)}, {v(acc + 8 * kap + q)}, {v(T + q)}")
        pack8(k, V_FA + 8 + 4 * kap, acc + 8 * kap)
        unpack8(k, acc + 8 * kap, V_FA + 8 + 4 * kap)
        e(f"buffer_store_dwordx4 {v(V_FA + 8 + 4 * kap, 4)}, {v(V_X)}, {s(S_E0, 4)}, 0 offen offset:{kap * 1024}")
    e(f"v_mov_b32 {v(T)}, 0")
    e(f"v_mov_b32 {v(T + 1)}, 0")
    for q in range(16):
        e(f"v_add_f32 {v(T)}, {v(T)}, {v(acc + q)}")
        e(f"v_fmac_f32 {v(T + 1)}, {v(acc + q)}, {v(acc + q)}")
    e(f"v_mov_b32 {v(T + 2)}, {v(T)}")
    e(f"v_mov_b32 {v(T + 3)}, {v(T + 1)}")
    e("s_nop 1")
    e(f"v_permlane32_swap_b32 {v(T)}, {v(T + 2)}")
    e(f"v_permlane32_swap_b32 {v(T + 1)}, {v(T + 3)}")
    e("s_nop 1")
    e(f"v_add_f32 {v(T)}, {v(T)}, {v(T + 2)}")
    e(f"v_add_f32 {v(T + 1)}, {v(T + 1)}, {v(T + 3)}")
    e(f"v_cmp_gt_u32 vcc, 32, {v(V_LANE)}")
    e("s_and_saveexec_b64 s[50:51], vcc")
    e(f"buffer_store_dwordx2 {v(T, 2)}, {v(V_X + 1)}, {s(S_E2, 4)}, 0 offen")
    e("s_mov_b64 exec, s[50:51]")
    finish(k, 5)
    return k


def gen_t4a():
    k = Kern("mlp1_kernel", vgpr=224, agpr=0, sgpr=64)
    e = k.e
    header(k, 224, [(44, 64, 2), (46, 112, 2), (54, 72, 2)])
    k.stamp()
    e("s_and_b32 s48, s2, 7")
    e("s_lshr_b32 s49, s2, 3")
    e("s_cmp_ge_u32 s49, 14")
    e("s_cselect_b32 s50, 1, 0")
    e("s_cselect_b32 s51, 14, 0")
    e("s_sub_u32 s49, s49, s51")
    e("s_lshl_b32 s48, s48, 1")
    e("s_add_u32 s48, s48, s50")
    e(f"s_lshl_b32 {s(S_M0)}, s48, 7")
    e(f"s_lshl_b32 {s(S_N0)}, s49, 7")
    e("s_waitcnt lgkmcnt(0)")
    srd(k, S_W, 44, 0, 512 * 3584)
    srd(k, S_A, 46, OFF_X1, SZ_ACT)
    srd(k, S_E0, 46, OFF_H3, SZ_H3)
    srd(k, S_E1, 46, OFF_ST, SZ_ST)
    srd(k, S_E2, 46, OFF_MOD + MOD_CS3, 1792 * 4)
    g = Gemm(k, 128, 128, 512, 64, 3584, 32)
    g.setup()
    e(f"s_lshl_b32 {s(S_WSO)}, {s(S_N0)}, 1")
    e(f"s_lshl_b32 {s(S_ASO)}, {s(S_M0)}, 10")
    g.prologue_loads()
    if PREFETCH:
        g.after_last = prefetch_items(k, 54, 1835008, 2)
    out_frag_offset(k, g, V_X, 112, 48)
    e(f"s_mov_b32 s50, {f32hex(GELU_C2)}")
    e(f"v_mov_b32 {v(V_X + 15)}, {f32hex(GELU_C1)}")
    e(f"v_and_b32 {v(V_X + 1)}, 31, {v(V_LANE)}")
    e(f"s_lshl_b32 s48, {s(S_WI)}, 6")
    e(f"s_add_u32 s48, s48, {s(S_M0)}")
    e(f"v_add_u32 {v(V_X + 1)}, s48, {v(V_X + 1)}")
    e(f"v_lshlrev_b32 {v(V_X + 1)}, 7, {v(V_X + 1)}")
    e(f"v_lshrrev_b32 {v(V_X + 2)}, 5, {v(V_LANE)}")
    e(f"v_lshlrev_b32 {v(V_X + 2)}, 5, {v(V_X + 2)}")
    e(f"s_lshl_b32 s48, {s(S_WJ)}, 6")
    e(f"s_add_u32 s48, s48, {s(S_N0)}")
    e("s_lshl_b32 s48, s48, 2")
    e(f"v_add_u32 {v(V_X + 2)}, s48, {v(V_X + 2)}")
    k.stamp()
    g.main()
    k.stamp()
    ST = V_FA
    CS = V_FB
    for nb in range(2):
        for kap in range(2):
            for hh in range(2):
                k.vmem(f"buffer_load_dwordx4 {v(CS + (nb * 2 + kap) * 8 + 4 * hh, 4)}, {v(V_X + 2)}, {s(S_E2, 4)}, 0 offen offset:{(nb * 32 + kap * 16) * 4 + 16 * hh}", "cs")
    MEAN, RSTD = V_X + 4, V_X + 6
    for qb in range(2):
        for q in range(8):
            e(f"s_mov_b32 s48, {qb * 32 * 128}")
            k.vmem(f"buffer_load_dwordx4 {v(ST + 4 * q, 4)}, {v(V_X + 1)}, {s(S_E1, 4)}, s48 offen offset:{16 * q}", f"st_{qb}")
        e(k.vm_wait([f"st_{qb}"]))
        for q in range(1, 16):
            e(f"v_add_f32 {v(ST)}, {v(ST)}, {v(ST + 2 * q)}")
            e(f"v_add_f32 {v(ST + 1)}, {v(ST + 1)}, {v(ST + 2 * q + 1)}")
        e(f"v_mul_f32 {v(MEAN + qb)}, {1.0 / 512!r}, {v(ST)}")
        e(f"v_mul_f32 {v(RSTD + qb)}, {1.0 / 512!r}, {v(ST + 1)}")
        e(f"v_fma_f32 {v(RSTD + qb)}, -{v(MEAN + qb)}, {v(MEAN + qb)}, {v(RSTD + qb)}")
        e(f"v_max_f32 {v(RSTD + qb)}, 0, {v(RSTD + qb)}")
        e(f"v_add_f32 {v(RSTD + qb)}, 0x3727c5ac, {v(RSTD + qb)}")
        e(f"v_rsq_f32 {v(RSTD + qb)}, {v(RSTD + qb)}")
        e("s_nop 1")
    TMP = V_FA + 32
    PK = V_FA + 48
    for qb in range(2):
        for nb in range(2):
            acc = g.acc(nb, qb)
            for q in range(16):
                e(f"v_fma_f32 {v(acc + q)}, -{v(MEAN + qb)}, {v(CS + nb * 16 + q)}, {v(acc + q)}")
            for q in range(16):
                e(f"v_mul_f32 {v(acc + q)}, {v(acc + q)}, {v(RSTD + qb)}")
            for kap in range(2):
                round8(k, acc + 8 * kap, PK)
            gelu_block(k, acc, 16, TMP, None, 50)
            for kap in range(2):
                t = PK + 4 + ((nb * 2 + kap) % 2) * 4
                pack8(k, t, acc + 8 * kap)
                e(f"s_mov_b32 s48, {qb * 112 * 1024}")
                e(f"buffer_store_dwordx4 {v(t, 4)}, {v(V_X)}, {s(S_E0, 4)}, s48 offen offset:{(nb * 2 + kap) * 1024}")
    finish(k, 6)
    return k


def gen_t4b():
    k = Kern("mlp2_kernel", vgpr=224, agpr=0, sgpr=64)
    e = k.e
    header(k, 256, [(44, 72, 2), (46, 112, 2), (52, 96, 2)])
    k.stamp()
    tile64_map(k)
    e("s_waitcnt lgkmcnt(0)")
    srd(k, S_W, 44, 0, 1792 * 1024)
    srd(k, S_A, 46, OFF_H3, SZ_H3)
    srd(k, S_E0, 52, 0, SZ_ACT)
    srd(k, S_E1, 46, OFF_X1, SZ_ACT)
    srd(k, S_E2, 46, OFF_X2, SZ_ACT)
    srd(k, S_E3, 46, OFF_MOD + MOD_GB, 2048)
    g = Gemm(k, 64, 64, 1792, 128, 1024, 112)
    g.setup()
    e(f"s_lshl_b32 {s(S_WSO)}, {s(S_N0)}, 1")
    e(f"s_lshr_b32 s48, {s(S_M0)}, 5")
    e(f"s_mul_i32 {s(S_ASO)}, s48, {112 * 1024}")
    g.prologue_loads()
    out_frag_offset(k, g, V_X, 32, 48)
    e(f"v_and_b32 {v(V_X + 1)}, 31, {v(V_LANE)}")
    e(f"s_lshl_b32 s48, {s(S_WI)}, 5")
    e(f"s_add_u32 s48, s48, {s(S_M0)}")
    e(f"v_add_u32 {v(V_X + 1)}, s48, {v(V_X + 1)}")
    e(f"v_lshlrev_b32 {v(V_X + 1)}, 10, {v(V_X + 1)}")
    e(f"v_lshrrev_b32 {v(V_X + 2)}, 5, {v(V_LANE)}")
    e(f"v_lshlrev_b32 {v(V_X + 2)}, 3, {v(V_X + 2)}")
    e(f"s_lshl_b32 s48, {s(S_WJ)}, 5")
    e(f"s_add_u32 s48, s48, {s(S_N0)}")
    e(f"v_add_u32 {v(V_X + 2)}, s48, {v(V_X + 2)}")
    e(f"v_lshl_add_u32 {v(V_X + 1)}, {v(V_X + 2)}, 1, {v(V_X + 1)}")
    e(f"v_lshlrev_b32 {v(V_X + 2)}, 2, {v(V_X + 2)}")
    X1R, X2R, GB = V_ACC + 16, V_ACC + 24, V_ACC + 32
    extra = []
    for kap in range(2):
        extra.append((f"buffer_load_dwordx4 {v(X1R + 4 * kap, 4)}, {v(V_X)}, {s(S_E1, 4)}, 0 offen offset:{kap * 1024}", "ep"))
        extra.append((f"buffer_load_dwordx4 {v(X2R + 4 * kap, 4)}, {v(V_X)}, {s(S_E2, 4)}, 0 offen offset:{kap * 1024}", "ep"))
        for hh in range(2):
            extra.append((f"buffer_load_dwordx4 {v(GB + 8 * kap + 4 * hh, 4)}, {v(V_X + 2)}, {s(S_E3, 4)}, 0 offen offset:{kap * 64 + 16 * hh}", "ep"))
    k.stamp()
    g.main(extra_loads=extra)
    k.stamp()
    e("s_nop 11")
    e(k.vm_wait(["ep"]))
    acc = g.acc(0, 0)
    T = V_FB
    for kap in range(2):
        x = acc + 8 * kap
        round8(k, x, V_FA)
        unpack8(k, T, X1R + 4 * kap)
        for q in range(8):
            e(f"v_add_f32 {v(x + q)}, {v(x + q)}, {v(T + q)}")
        round8(k, x, V_FA)
        for q in range(8):
            e(f"v_mul_f32 {v(x + q)}, {v(x + q)}, {v(GB + 8 * kap + q)}")
        round8(k, x, V_FA)
        unpack8(k, T, X2R + 4 * kap)
        for q in range(8):
            e(f"v_add_f32 {v(x + q)}, {v(x + q)}, {v(T + q)}")
        pack8(k, V_FA + 8 + 4 * kap, x)
        e(f"buffer_store_dwordx4 {v(V_FA + 8 + 4 * kap, 4)}, {v(V_X + 1)}, {s(S_E0, 4)}, 0 offen offset:{kap * 32}")
    finish(k, 7)
    return k


def kernels():
    return [
        (gen_t1(), 256, 256, 131072),
        (gen_row(), 256, 256, 4096),
        (gen_t2(), 256, 256, 131072),
        (gen_t3(), 256, 256, 131072),
        (gen_t4a(), 224, 256, 131072),
        (gen_t4b(), 256, 256, 131072),
    ]
```

```python
import sys, importlib
import asmlib, layout, k_pre, k_attn, k_tail, gen
plain = "--plain" in sys.argv
upto = 99
for a in sys.argv[1:]:
    if a.startswith("--upto="): upto = int(a.split("=")[1])
asmlib.Kern.STAMPS = not plain
for spec in sys.argv[1:]:
    if spec.startswith("--"): continue
    name, _, kv = spec.partition(":")
    saved = []
    for item in filter(None, kv.split(",")):
        key, val = item.split("=")
        mod, _, attr = key.partition(".")
        m = {"a": k_attn, "t": k_tail, "p": k_pre}[mod]
        obj = m
        while "." in attr:
            h, attr = attr.split(".", 1); obj = getattr(obj, h)
        saved.append((obj, attr, getattr(obj, attr)))
        setattr(obj, attr, eval(val))
    ks = gen.all_kernels()[:upto]
    import io, contextlib
    buf = io.StringIO()
    with contextlib.redirect_stdout(buf):
        bad = gen.build(ks, f"var_{name}.s")
    print(name, "problems:", bad)
    if bad: print(buf.getvalue())
    for obj, attr, val in saved: setattr(obj, attr, val)
```
